```python
import torch

def _softmax(x, axis=-1):
    return torch.softmax(x, dim=axis)
def _gelu(x):
    return torch.nn.functional.gelu(x, approximate="tanh")
def _silu(x):
    return torch.nn.functional.silu(x)
def _sigmoid(x):
    return torch.sigmoid(x)
def _layernorm(x, axis=-1, eps=1e-5):
    m = x.mean(dim=axis, keepdim=True)
    v = x.var(dim=axis, keepdim=True, unbiased=False)
    return (x - m) / torch.sqrt(v + eps)
def _scatter_add(tgt, idx, src, axis=0):
    return tgt.clone().index_add_(axis, idx, src)
def _segment_sum(src, seg, n):
    out = torch.zeros((n,) + src.shape[1:], dtype=src.dtype)
    return out.index_add_(0, seg, src)
def _pad(x, pw):
    flat = tuple(v for pair in reversed(pw) for v in pair)
    return torch.nn.functional.pad(x, flat)

kernel_name = 'gated_mix__compressed_kv_cla__dense_activation_mish__decode'

def setup_inputs():

    _w = (lambda a: (lambda t: t.to(torch.bfloat16) if t.is_floating_point() else t)(torch.as_tensor(a)))
    def _A_setup():
        B, H, Sq, Sk, D, M = 4, 32, 1, 4096, 128, 512
        Dc = 4 * D
        return {
            "x": _w((lambda *s: torch.randn(*s, dtype=torch.bfloat16) * 0.05)(B, Sq, M)),
            "c_kv": _w((lambda *s: torch.randn(*s, dtype=torch.bfloat16) * 0.4)(B, Sk, Dc)),
            "w_q": _w((lambda *s: torch.randn(*s, dtype=torch.bfloat16) * 12.8)(M, H, D) * (M ** -0.5)),
            "w_uk": _w((lambda *s: torch.randn(*s, dtype=torch.bfloat16) * 12.8)(Dc, H, D) * (Dc ** -0.5)),
            "w_uv": _w((lambda *s: torch.randn(*s, dtype=torch.bfloat16) * 0.4)(Dc, H, D) * (Dc ** -0.5)),
            "w_o": _w((lambda *s: torch.randn(*s, dtype=torch.bfloat16) * 0.4)(H, D, M) * ((H * D) ** -0.5)),
        }
    _A_in = _A_setup()

    def _B_setup():
        B, S, D, F = 4, 1, 512, 1376
        return {
            "x": _w((lambda *s: torch.randn(*s, dtype=torch.bfloat16) * 0.05)(B, S, D)),
            "w1": _w((lambda *s: torch.randn(*s, dtype=torch.bfloat16) * 12.8)(D, F) * (D ** -0.5)),
            "b1": _w((lambda *s: torch.randn(*s, dtype=torch.bfloat16) * 0.2)(F)),
            "w2": _w((lambda *s: torch.randn(*s, dtype=torch.bfloat16) * 0.05)(F, D) * (F ** -0.5)),
        }
    _B_in = _B_setup()

    return {
        "A_x": _A_in["x"],
        "A_c_kv": _A_in["c_kv"],
        "A_w_q": _A_in["w_q"],
        "A_w_uk": _A_in["w_uk"],
        "A_w_uv": _A_in["w_uv"],
        "A_w_o": _A_in["w_o"],
        "B_x": _B_in["x"],
        "B_w1": _B_in["w1"],
        "B_b1": _B_in["b1"],
        "B_w2": _B_in["w2"],
        "gate_w": _w((lambda *s: torch.randn(*s, dtype=torch.bfloat16) * 0.05)(512) * 16.0),
    }

def reference(A_x, A_c_kv, A_w_q, A_w_uk, A_w_uv, A_w_o, B_x, B_w1, B_b1, B_w2, gate_w):
    def _A_ref(x, c_kv, w_q, w_uk, w_uv, w_o):
        B, Sq, M = x.shape[0], x.shape[1], x.shape[2]
        Sk = c_kv.shape[1]
        H, D = w_q.shape[1], w_q.shape[2]
        q = torch.einsum("bqm,mhd->bhqd", x, w_q)
        k = torch.einsum("bkc,chd->bhkd", c_kv, w_uk)
        v = torch.einsum("bkc,chd->bhkd", c_kv, w_uv)
        scores = torch.einsum("bhqd,bhkd->bhqk", q, k) * (D ** -0.5)
        off = Sk - Sq
        qi = torch.arange(Sq)[:, None]
        kj = torch.arange(Sk)[None, :]
        cmask = kj <= (qi + off)
        scores = torch.where(cmask[None, None], scores, -1e9)
        p = _softmax(scores, axis=-1)
        ctx = torch.einsum("bhqk,bhkd->bhqd", p, v)
        return torch.einsum("bhqd,hdm->bqm", ctx, w_o)

    def _B_ref(x, w1, b1, w2):
        h = torch.einsum("bsd,df->bsf", x, w1) + b1
        sp = torch.log1p(torch.exp(-torch.abs(h))) + torch.where(h > 0, h, torch.zeros_like(h))
        act = h * torch.tanh(sp)
        return torch.einsum("bsf,fd->bsd", act, w2)

    x = A_x
    g = _sigmoid((x * gate_w).sum(-1, keepdims=True))
    a = _A_ref(x, A_c_kv, A_w_q, A_w_uk, A_w_uv, A_w_o)
    b = _B_ref(x, B_w1, B_b1, B_w2)
    return g * a + (1 - g) * b
```

```python
import re

REG_RE = re.compile(r'^(-|abs\()?\|?([vsa])(\d+)\|?\)?$')
RNG_RE = re.compile(r'^(-)?([vsa])\[(\d+):(\d+)\]$')

def regs_of(op):
    op = op.strip()
    if op in ('vcc',):
        return {('s', 'vcc_lo'), ('s', 'vcc_hi')}
    if op in ('vcc_lo', 'vcc_hi'):
        return {('s', op)}
    if op == 'exec':
        return {('s', 'exec_lo'), ('s', 'exec_hi')}
    if op in ('exec_lo', 'exec_hi'):
        return {('s', op)}
    if op == 'm0':
        return {('s', 'm0')}
    m = RNG_RE.match(op)
    if m:
        return {(m.group(2), i) for i in range(int(m.group(3)), int(m.group(4)) + 1)}
    m = REG_RE.match(op)
    if m:
        return {(m.group(2), int(m.group(3)))}
    return set()

TRANS = ('v_exp_f32', 'v_log_f32', 'v_rcp_f32', 'v_rsq_f32', 'v_sqrt_f32', 'v_sin_f32', 'v_cos_f32', 'v_rcp_iflag_f32')

class Inst:
    def __init__(self, text):
        self.text = text
        t = text.split(';')[0].strip()
        self.is_label = t.endswith(':')
        self.is_dir = t.startswith('.')
        self.empty = (t == '')
        self.op = ''
        self.dst = set(); self.src = set()
        self.kind = 'other'
        self.dpp = False
        if self.is_label or self.is_dir or self.empty:
            return
        parts = t.split(None, 1)
        self.op = parts[0]
        rest = parts[1] if len(parts) > 1 else ''
        ops = []; cur = ''; depth = 0
        for ch in rest:
            if ch in '[(': depth += 1
            if ch in '])': depth -= 1
            if ch == ',' and depth == 0:
                ops.append(cur.strip()); cur = ''
            else:
                cur += ch
        if cur.strip(): ops.append(cur.strip())
        mods = ''
        if ops:
            last = ops[-1].split()
            if len(last) > 1:
                ops[-1] = last[0]; mods = ' '.join(last[1:])
        self.ops = ops; self.mods = mods
        op = self.op
        self.dpp = ('row_' in mods) or ('quad_perm' in mods) or ('wave_' in mods)
        R = [regs_of(o) for o in ops]
        def u(lst):
            s = set()
            for x in lst: s |= x
            return s
        if op.startswith('v_mfma'):
            self.kind = 'mfma'
            self.dst = R[0]; self.srcA = R[1]; self.srcB = R[2]; self.srcC = R[3]
            self.src = R[1] | R[2] | R[3]
            self.passes = 8 if '32x32' in op else 4
        elif op.startswith('v_cmp'):
            self.kind = 'valu'; self.dst = R[0]; self.src = u(R[1:])
        elif op.startswith('v_readfirstlane') or op.startswith('v_readlane'):
            self.kind = 'valu'; self.dst = R[0]; self.src = u(R[1:]); self.readlane = True
        elif op.startswith('v_permlane') and 'swap' in op:
            self.kind = 'valu'; self.dst = R[0] | R[1]; self.src = R[0] | R[1]; self.permlane = True
        elif op.startswith('v_'):
            self.kind = 'valu'; self.dst = R[0]; self.src = u(R[1:])
            if op.startswith(('v_fmac', 'v_dot2c', 'v_mac', 'v_pk_fmac')) or self.dpp:
                self.src |= R[0]
            if op.startswith(('v_add_co', 'v_sub_co', 'v_addc_co', 'v_subb_co')):
                self.dst = R[0] | R[1]; self.src = u(R[2:])
        elif op.startswith('ds_'):
            self.kind = 'ds'
            if op.startswith(('ds_read', 'ds_bpermute', 'ds_permute', 'ds_swizzle')):
                self.dst = R[0]; self.src = u(R[1:])
            else:
                self.src = u(R)
        elif op.startswith(('buffer_', 'global_')):
            self.kind = 'vmem'
            self.lds = (' lds' in (' ' + mods)) or ('_lds_' in op)
            if 'store' in op:
                self.src = u(R); self.store = True
                nd = 4 if 'x4' in op else 3 if 'x3' in op else 0
                if nd:
                    self.wide_data = R[0] if op.startswith('buffer_') else R[1]
            elif 'atomic' in op:
                self.src = u(R)
                if 'sc0' in mods: self.dst = R[0]
            elif op.startswith(('buffer_wbl2', 'buffer_inv')):
                pass
            elif self.lds:
                self.src = u(R) | {('s', 'm0')}
            else:
                self.dst = R[0]; self.src = u(R[1:])
        elif op.startswith('s_'):
            self.kind = 'salu'
            if op.startswith(('s_cmp', 's_cbranch', 's_branch', 's_waitcnt', 's_nop', 's_barrier', 's_endpgm', 's_sleep', 's_setprio', 's_bitcmp')):
                self.src = u(R)
            else:
                self.dst = R[0] if R else set(); self.src = u(R[1:])
                if 'saveexec' in op:
                    self.dst |= regs_of('exec')
            if op.startswith(('s_load', 's_memrealtime', 's_memtime', 's_atomic', 's_buffer_load')):
                self.kind = 'smem'

    def nstates(self):
        if self.op == 's_nop':
            return int(self.ops[0], 0) + 1
        return 1

def isv(rs): return {r for r in rs if r[0] in 'va'}
def iss(rs): return {r for r in rs if r[0] == 's'}

def required(prod, cons):
    n = 0
    pk, ck = prod.kind, cons.kind
    if pk == 'valu':
        wv = isv(prod.dst); ws = iss(prod.dst)
        if ck == 'mfma' and (wv & cons.src): n = max(n, 2)
        if ck == 'valu':
            if cons.dpp and (wv & cons.src): n = max(n, 2)
            if getattr(cons, 'permlane', False) and (wv & cons.src): n = max(n, 2)
            if getattr(cons, 'readlane', False) and (wv & cons.src): n = max(n, 1)
            if prod.op.replace('_e32', '').replace('_e64', '') in TRANS and (wv & cons.src): n = max(n, 1)
            if ws & cons.src:
                n = max(n, 4 if getattr(cons, 'readlane', False) else 2)
            if ('op_sel' in prod.mods or 'dst_sel' in prod.mods) and (wv & (cons.src | cons.dst)): n = max(n, 1)
        if ck == 'vmem' and (ws & cons.src): n = max(n, 5)
        if prod.op.startswith('v_dot'):
            same = (cons.op == prod.op)
            if ck in ('valu', 'mfma', 'vmem', 'ds') and (wv & (cons.src | cons.dst)):
                if not same: n = max(n, 3)
                else:
                    ab = set()
                    for o in cons.ops[1:3]: ab |= regs_of(o)
                    if wv & ab: n = max(n, 3)
    if pk == 'mfma':
        p = prod.passes
        big = {4: 8, 8: 12}[p]
        if ck == 'mfma':
            if prod.dst & (cons.srcA | cons.srcB): n = max(n, big)
            if prod.dst & cons.srcC:
                if not (prod.dst == cons.srcC and prod.passes == cons.passes):
                    n = max(n, {4: 6, 8: 10}[p])
            elif prod.dst & cons.dst:
                n = max(n, big)
        elif ck in ('valu', 'vmem', 'ds'):
            if prod.dst & (cons.src | cons.dst): n = max(n, big)
            if ck == 'valu' and (prod.srcC & cons.dst): n = max(n, {4: 3, 8: 7}[p])
    if pk == 'salu' and ('s', 'm0') in prod.dst:
        if ck == 'vmem' and getattr(cons, 'lds', False): n = max(n, 1)
    if pk == 'vmem' and getattr(prod, 'wide_data', None):
        if ck in ('valu', 'mfma') and (prod.wide_data & cons.dst): n = max(n, 2)
        elif ck in ('vmem', 'ds') and (prod.wide_data & cons.dst): n = max(n, 1)
    return n

def pad_hazards(lines):
    out = []
    for text in lines:
        ins = Inst(text)
        if ins.is_label or ins.is_dir or ins.empty:
            out.append(ins); continue
        need = 0; dist = 0
        for prev in reversed(out):
            if prev.is_label or prev.is_dir or prev.empty:
                continue
            r = required(prev, ins)
            if r > dist: need = max(need, r - dist)
            dist += prev.nstates()
            if dist >= 24: break
        while need > 0:
            k = min(need, 16)
            out.append(Inst(f'    s_nop {k - 1}')); need -= k
        out.append(ins)
    return [i.text for i in out]

class Asm:
    def __init__(self):
        self.lines = []
        self.vm = []
    def __call__(self, s):
        for l in s.split('\n'):
            l = l.strip()
            if l: self.lines.append('    ' + l if not l.endswith(':') else l)
    def label(self, name): self.lines.append(name + ':')
    def comment(self, s): self.lines.append('    ; ' + s)
    def vmem(self, text, tag):
        self(text); self.vm.append(tag)
    def wait_vm(self, tag):
        idx = max(i for i, t in enumerate(self.vm) if t == tag)
        n = len(self.vm) - 1 - idx
        assert n <= 63
        self(f's_waitcnt vmcnt({n})')
        self.vm = self.vm[idx + 1:]
    def wait_vm_all(self):
        self('s_waitcnt vmcnt(0)'); self.vm = []
    def text(self):
        return '\n'.join(pad_hazards(self.lines)) + '\n'
```

```python
import sys, argparse, struct
sys.path.insert(0, 'gen')
from asmlib import Asm

KNAME = 'gated_mix__compressed_kv_cla__dense_activation_mish__decode_kernel'

WS_EPOCH = 0
WS_QT    = 0x180000
WS_QLT   = 0x20000
WS_STATS = 0x60000
WS_HX    = 0x140000
WS_CLRF  = 0x68000
WS_PCTX  = 0x80000
WS_POUT  = 0x100000
WS_PART  = 0x200000
WS_PCTXF = 0x600000
WS_QTF   = 0x680000
WS_DIAG  = 0x800000
import os
_WB = int(os.environ.get('WSBASE', '0'), 0)
for _n in [n for n in list(globals()) if n.startswith('WS_') and n != 'WS_EPOCH']:
    globals()[_n] += _WB
CKV   = 0
CKV_STRIDE = 1056
R16   = 135168
XS    = 151552
ALIAS = XS + 4096
W1I   = ALIAS
SM_P  = ALIAS
SM_CLP = SM_P + 4096
SM_MAX = SM_CLP + 1024
SM_ZERO = SM_MAX + 512
SM_ACT = SM_ZERO + 128
SM_G  = 127*CKV_STRIDE + 1024
SM_FLAG = SM_G + 16
SM_FLAG2 = 126*CKV_STRIDE + 1024
SM_FLAG4 = 125*CKV_STRIDE + 1024
UKI = CKV + 112*CKV_STRIDE
SM_FLAG5 = 124*CKV_STRIDE + 1024
SM_FLAG3 = SM_FLAG2 + 16
UVI = CKV
WOI = CKV + 16384
W2I = CKV + 32768
SM_CTXP = CKV + 40960
HRED = CKV + 45056
LDS_BYTES = 163840
assert SM_ACT + 512 <= LDS_BYTES

sX, sCKV, sWQ, sWUK, sWUV, sWO, sW1, sW2, sWS, sGW, sB1, sOUT = [f's[{4+4*i}:{7+4*i}]' for i in range(12)]
def srd_base(s): return int(s[2:s.index(':')])
sINB, sU0, sFB, sBLKV = 's52', 's53', 's54', 's55'
sW, sH, sCS, sB, sSP, sHG, sNONCE, sF0, sMLPV = 's59', 's60', 's61', 's62', 's63', 's64', 's65', 's66', 's67'
sT0, sT1, sT2, sT3, sT4, sT5 = 's70', 's71', 's72', 's73', 's74', 's75'
sM0, sM1 = 's[76:77]', 's[78:79]'
sSPIN = 's3'
STAMP0 = 80

vL, vI, vG, vL16 = 'v1', 'v2', 'v3', 'v10'
RA = 20; RB = 84; RC = 116; RD = 148; RE = 212; RF = 228; T = 248

def v(a, n=1): return f'v{a}' if n == 1 else f'v[{a}:{a+n-1}]'
LOG2E = 1.4426950408889634
def f2u(x): return struct.unpack('<I', struct.pack('<f', x))[0]

def build(diag=False, stop=None, spin_limit=20000, opts=()):
    a = Asm()
    NT = ' nt'
    thr = 6
    FASTTRY = 6
    slp = 2
    for o in opts:
        if o.startswith('thr'): thr = int(o[3:])
        if o.startswith('slp'): slp = int(o[3:])
        if o.startswith('fast'): FASTTRY = int(o[4:])
    nstamp = [0]; stamp_names = []; pending = []
    def stamp(name):
        if not diag: return
        k = nstamp[0]; nstamp[0] += 1
        slot = k % 11
        assert all(p % 11 != slot for p in pending), 'stamp slot still pending'
        stamp_names.append(name); pending.append(k)
        a(f's_memrealtime s[{STAMP0+2*slot}:{STAMP0+2*slot+1}]')
    def flush_stamps():
        if not diag: return
        for k in pending: a(f'v_writelane_b32 v255, s{STAMP0+2*(k%11)}, {k}')
        pending.clear()
    def barrier(name, wait=True):
        if wait: a('s_waitcnt lgkmcnt(0)'); flush_stamps()
        a('s_barrier')
        stamp(name)
    def nmask_on():
        a('s_mov_b32 exec_lo, 0x000f000f'); a('s_mov_b32 exec_hi, 0x000f000f')
    def exec_all(): a('s_mov_b64 exec, -1')
    def spin_tail(loop, done):
        a(f's_add_u32 {sSPIN}, {sSPIN}, 1')
        a(f's_cmp_gt_u32 {sSPIN}, {spin_limit}')
        a(f's_cbranch_scc1 {done}')
        if slp: a(f's_sleep {slp}')
        a(f's_branch {loop}')
    def nonce_finish():
        a(f's_add_u32 {sNONCE}, {sNONCE}, 0x9e3779b9')
        a(f's_add_u32 {sT2}, {sNONCE}, 0x9e3779b9')
        a(f's_cmp_eq_u32 {sNONCE}, -1')
        a(f's_cselect_b32 {sNONCE}, {sT2}, {sNONCE}')

    a('s_cmp_ge_u32 s2, 256')
    a('s_cbranch_scc1 L_end')
    a('s_getpc_b64 s[70:71]')
    a.label('L_pf')
    a('v_lshlrev_b32 v4, 5, v0')
    a(f'v_min_u32 v4, L_end-L_pf, v4')
    a('global_load_dword v254, v4, s[70:71]')
    for s, off in ((sX, 0), (sWQ, 16), (sCKV, 8), (sWS, 104), (sWUK, 24), (sW1, 56), (sGW, 80), (sB1, 64),
                   (sWO, 40), (sW2, 72), (sWUV, 32), (sOUT, 88)):
        b = srd_base(s)
        a(f's_load_dwordx2 s[{b}:{b+1}], s[0:1], {off}')
    if diag:
        a('v_mov_b32 v255, 0')
        for k in range(STAMP0, 102): a(f's_mov_b32 s{k}, 0')
    stamp('start')
    sizes = {sX: 4096, sWQ: 4194304, sCKV: 16777216, sWS: 0x10000000, sWUK: 4194304, sW1: 512*1376*2, sGW: 1024, sB1: 2752,
             sWO: 4194304, sW2: 512*1376*2, sWUV: 4194304, sOUT: 4096}
    def srd_fin(*ss):
        for s_ in ss:
            b = srd_base(s_)
            a(f's_mov_b32 s{b+2}, {sizes[s_]}')
            a(f's_mov_b32 s{b+3}, 0x20000')
    a(f'v_lshrrev_b32 v4, 6, v0')
    a(f'v_and_b32 {vL}, 63, v0')
    a(f'v_readfirstlane_b32 {sW}, v4')
    a(f'v_and_b32 {vI}, 15, v0')
    a(f'v_bfe_u32 {vG}, v0, 4, 2')
    a(f'v_lshlrev_b32 {vL16}, 4, {vL}')
    if 'scramble' in opts:
        a(f's_lshr_b32 {sT0}, s2, 5')
        a(f's_and_b32 {sT1}, s2, 31')
        a(f's_lshl_b32 {sT1}, {sT1}, 3')
        a(f's_or_b32 s2, {sT0}, {sT1}')
    a(f's_and_b32 {sT0}, s2, 7')
    a(f's_lshr_b32 {sT1}, s2, 3')
    a(f's_bfe_u32 {sHG}, {sT1}, 0x10001')
    a(f's_lshr_b32 {sCS}, {sT1}, 2')
    a(f's_and_b32 {sT2}, {sT1}, 1')
    a(f's_lshl_b32 {sH}, {sHG}, 3')
    a(f's_add_u32 {sH}, {sH}, {sT0}')
    a(f's_lshl_b32 {sH}, {sH}, 1')
    a(f's_add_u32 {sH}, {sH}, {sT2}')
    srd_fin(sX, sWQ, sCKV, sWS, sWUK, sW1)
    a(f's_lshl_b32 {sT3}, {sHG}, 1')
    a(f's_add_u32 {sT3}, {sT3}, {sT2}')
    a(f's_lshl_b32 {sFB}, {sT3}, 3')
    a(f's_add_u32 {sFB}, {sFB}, {sT0}')
    a(f's_cmp_lt_u32 {sFB}, 22')
    a(f's_cselect_b32 {sBLKV}, 1, 0')
    a(f's_lshr_b32 {sB}, {sT0}, 1')
    a(f's_and_b32 {sT3}, {sT0}, 1')
    a(f's_lshl_b32 {sT3}, {sT3}, 3')
    a(f's_add_u32 {sT3}, {sT3}, {sCS}')
    a(f's_lshl_b32 {sT3}, {sT3}, 1')
    a(f's_add_u32 {sSP}, {sT3}, {sT2}')
    a(f's_lshl_b32 {sINB}, {sH}, 3')
    a(f's_add_u32 {sINB}, {sINB}, {sCS}')
    a(f's_lshl_b32 {sINB}, {sINB}, 14')
    a(f's_add_u32 {sINB}, {sINB}, {WS_PART}')
    for k in range(4): a(f'v_mov_b32 v{T+k}, -1')
    a('v_mov_b32 v6, 0')
    wb = srd_base(sWS)
    a(f's_cmp_ge_u32 {sW}, 4')
    a('s_cbranch_scc1 L_loader')
    a(f's_lshl_b32 {sT1}, {sH}, 8')
    a(f'v_bfe_u32 v4, {vL}, 4, 1')
    a(f'v_lshlrev_b32 v4, 1, v4')
    a(f'v_and_b32 v5, 7, {vL}')
    a(f'v_xor_b32 v4, v4, v5')
    a(f'v_xor_b32 v5, 4, v4')
    a(f'v_lshlrev_b32 v4, 4, v4')
    a(f'v_lshlrev_b32 v5, 4, v5')
    a(f'v_lshrrev_b32 v6, 3, {vL}')
    a(f'v_lshl_add_u32 v8, v6, 13, v4')
    a(f'v_lshl_add_u32 v9, v6, 13, v5')
    a(f'v_mul_u32_u24 v6, 2752, v6')
    a(f'v_add_u32 v4, v6, v4')
    a(f'v_add_u32 v11, v6, v5')
    a(f's_lshr_b32 {sT3}, {sCS}, 1')
    a(f's_lshl_b32 {sT3}, {sT3}, 2')
    a(f's_add_u32 {sT3}, {sT3}, {sW}')
    a(f's_lshl_b32 {sT3}, {sT3}, 18')
    a(f's_and_b32 {sT4}, {sCS}, 1')
    a(f's_lshl_b32 {sT4}, {sT4}, 7')
    a(f's_add_u32 {sT3}, {sT3}, {sT4}')
    a(f's_add_u32 {sT3}, {sT3}, {sT1}')
    a(f's_lshl_b32 {sT4}, {sW}, 12')
    a(f's_add_u32 m0, {sT4}, {R16}')
    a.vm = []
    a('s_waitcnt lgkmcnt(0)')
    stamp('karg')
    for jj in range(4):
        if jj:
            a(f's_add_u32 {sT3}, {sT3}, {8*8192}')
            a(f's_add_u32 m0, m0, 1024')
            a('s_nop 0')
        a.vmem(f'buffer_load_dwordx4 v{8+(jj&1)}, {sWQ}, {sT3} offen{NT} lds', 'WQ')
    a(f's_lshl_b32 {sT3}, {sW}, 10')
    a(f's_add_u32 m0, {sT3}, {XS}')
    a(f's_load_dword {sNONCE}, s[{wb}:{wb+1}], {WS_EPOCH}')
    a.vmem(f'buffer_load_dwordx4 {vL16}, {sX}, {sT3} offen lds', 'X')
    a(f'v_lshlrev_b32 v12, 2, {vG}')
    a(f'v_xor_b32 v12, v12, {vI}')
    a(f'v_lshlrev_b32 v12, 4, v12')
    a(f'v_lshl_add_u32 v12, {vG}, 13, v12')
    a(f's_lshl_b32 {sT2}, {sCS}, 2')
    a(f's_add_u32 {sT2}, {sT2}, {sW}')
    a(f's_lshl_b32 {sT2}, {sT2}, 17')
    a(f's_add_u32 {sT2}, {sT2}, {sT1}')
    a(f's_mul_i32 {sT3}, {sW}, {4*CKV_STRIDE}')
    a(f's_add_u32 m0, {sT3}, {UKI}')
    for jj in range(4):
        if jj:
            a(f's_add_u32 {sT2}, {sT2}, {4*8192}')
            a(f's_add_u32 m0, m0, {CKV_STRIDE}')
        a('s_nop 0')
        a.vmem(f'buffer_load_dwordx4 v12, {sWUK}, {sT2} offen{NT} lds', 'WUK')
    hvm = list(a.vm)
    a('s_branch L_hrest')

    a.label('L_loader')
    a(f's_sub_u32 {sU0}, {sW}, 4')
    a(f's_lshl_b32 {sT0}, {sB}, 22')
    a(f's_lshl_b32 {sT3}, {sSP}, 17')
    a(f's_add_u32 {sT0}, {sT0}, {sT3}')
    a(f's_lshl_b32 {sT3}, {sU0}, 15')
    a(f's_add_u32 {sT0}, {sT0}, {sT3}')
    a(f's_add_u32 {sT4}, {sT0}, 32768')
    a(f's_mul_i32 {sT3}, {sU0}, {32*CKV_STRIDE}')
    a(f's_add_u32 m0, {sT3}, {CKV}')
    a(f'v_subrev_u32 v12, 256, v0')
    a(f'v_lshlrev_b32 v12, 4, v12')
    a(f's_lshl_b32 {sT2}, {sH}, 10')
    a(f's_lshl_b32 {sT3}, {sCS}, 7')
    a(f's_add_u32 {sT2}, {sT2}, {sT3}')
    a(f's_lshl_b32 {sT3}, {sU0}, 5')
    a(f's_add_u32 {sT2}, {sT2}, {sT3}')
    a(f's_add_u32 {sT5}, {sT2}, {WS_STATS}')
    a(f's_mov_b32 {sT2}, {sINB}')
    a('s_waitcnt lgkmcnt(0)')
    if diag: a(f'v_writelane_b32 v255, s{STAMP0}, 0')
    a(f's_load_dword {sNONCE}, s[{wb}:{wb+1}], {WS_EPOCH}')
    slow = 2
    for o in opts:
        if o.startswith('slow'): slow = int(o[4:])
    assert 1 <= slow <= 31 and 1 <= thr <= 32
    def ckv_row():
        a(f'buffer_load_dwordx4 {vL16}, {sCKV}, {sT0} offen{NT} lds')
        a(f's_add_u32 m0, m0, {CKV_STRIDE}')
        a(f's_add_u32 {sT0}, {sT0}, 1024')
    def NONCE_BLK():
        a('s_waitcnt lgkmcnt(0)')
        a(f's_add_u32 {sNONCE}, {sNONCE}, 0x9e3779b9')
        a(f's_add_u32 {sT3}, {sNONCE}, 0x9e3779b9')
        a(f's_cmp_eq_u32 {sNONCE}, -1')
        a(f's_cselect_b32 {sNONCE}, {sT3}, {sNONCE}')
        a(f'v_mov_b32 v14, {SM_FLAG3}')
    def ANN_BLK():
        a(f's_cmp_lg_u32 {sW}, 4')
        a('s_cbranch_scc1 L_noann')
        a(f'v_mov_b32 v12, {SM_FLAG}')
        a(f's_mov_b32 {sSPIN}, 0')
        a.label('L_clrsync')
        a(f'ds_read_b128 {v(RB,4)}, v12')
        a('s_waitcnt lgkmcnt(0)')
        a(f'v_xor_b32 v{RB}, {sNONCE}, v{RB}')
        for k in range(1, 4):
            a(f'v_xor_b32 v{RB+k}, {sNONCE}, v{RB+k}')
            a(f'v_or_b32 v{RB}, v{RB}, v{RB+k}')
        a(f'v_cmp_ne_u32 vcc, 0, v{RB}')
        a('s_cbranch_vccz L_clrann')
        a(f's_add_u32 {sSPIN}, {sSPIN}, 1')
        a(f's_cmp_gt_u32 {sSPIN}, {spin_limit*16}')
        a('s_cbranch_scc0 L_clrsync')
        a.label('L_clrann')
        a(f's_lshl_b32 {sT2}, {sH}, 3')
        a(f's_add_u32 {sT2}, {sT2}, {sCS}')
        a(f's_lshl_b32 {sT2}, {sT2}, 2')
        a(f's_add_u32 {sT2}, {sT2}, {WS_CLRF}')
        a(f'v_mov_b32 v12, 0')
        a(f'v_mov_b32 v13, {sNONCE}')
        a('s_mov_b64 exec, 1')
        a(f'buffer_store_dword v13, v12, {sWS}, {sT2} offen sc1')
        exec_all()
        a.label('L_noann')
    def GATE_BLK():
        a(f's_cmp_lg_u32 {sW}, 7')
        a('s_cbranch_scc1 L_nogate7')
        a(f'v_mov_b32 v15, {SM_FLAG5}')
        a(f's_mov_b32 {sSPIN}, 0')
        a.label('L_gate7')
        a(f'ds_read_b128 {v(RB,4)}, v15')
        a('s_waitcnt lgkmcnt(0)')
        a(f'v_xor_b32 v{RB}, {sNONCE}, v{RB}')
        for k in range(1, 4):
            a(f'v_xor_b32 v{RB+k}, {sNONCE}, v{RB+k}')
            a(f'v_or_b32 v{RB}, v{RB}, v{RB+k}')
        a(f'v_cmp_ne_u32 vcc, 0, v{RB}')
        a('s_cbranch_vccz L_nogate7')
        a(f's_add_u32 {sSPIN}, {sSPIN}, 1')
        a(f's_cmp_gt_u32 {sSPIN}, {spin_limit*16}')
        a('s_cbranch_scc1 L_nogate7')
        a('s_sleep 1')
        a('s_branch L_gate7')
        a.label('L_nogate7')
    c0 = 16; cstep = 2
    for o in opts:
        if o.startswith('clrat'): c0 = int(o[5:])
        if o.startswith('clrstep'): cstep = int(o[7:])
    nout = [0]
    def throttle():
        if nout[0] >= slow: a(f's_waitcnt vmcnt({slow-1})')
        nout[0] += 1
    def clear_op(k):
        throttle()
        if k < 4:
            if k: a(f's_add_u32 {sT2}, {sT2}, 4096')
            a(f'buffer_store_dwordx4 {v(T,4)}, v12, {sWS}, {sT2} offen sc1')
        else:
            a('s_mov_b64 exec, 3')
            a(f'buffer_store_dwordx4 {v(T,4)}, {vL16}, {sWS}, {sT5} offen sc1')
            exec_all()
    clr_rows = [c0 + cstep*k for k in range(5)]
    after = min(4, 32 - clr_rows[-1])
    flag_row = clr_rows[-1] + after
    assert flag_row <= 32 and after >= 1
    for r in range(33):
        if r == 1:
            NONCE_BLK()
        for k in range(5):
            if clr_rows[k] == r: clear_op(k)
        if r == flag_row:
            a(f's_lshl_b32 {sT3}, {sU0}, 2')
            a(f's_add_u32 {sT3}, {sT3}, {SM_FLAG}')
            a(f'v_mov_b32 v13, {sT3}')
            a(f'v_mov_b32 v14, {sNONCE}')
            a(f's_waitcnt vmcnt({after})')
            a('ds_write_b32 v13, v14')
            ANN_BLK()
        if r == 16:
            GATE_BLK()
        if r < 32:
            throttle(); ckv_row()
    a.label('L_ckv_done')
    a('s_waitcnt vmcnt(0)')
    if diag:
        k = nstamp[0]; nstamp[0] += 1; stamp_names.append('ckv')
        a(f's_memrealtime s[{STAMP0}:{STAMP0+1}]')
        a('s_waitcnt lgkmcnt(0)')
        a(f'v_writelane_b32 v255, s{STAMP0}, {k}')
    a('s_branch L_join')

    a.label('L_hrest')
    a.vm = list(hvm)
    stamp('hrest')
    a(f's_lshl_b32 {sT2}, {sH}, 11')
    a(f's_lshl_b32 {sT3}, {sCS}, 8')
    a(f's_add_u32 {sT2}, {sT2}, {sT3}')
    a(f's_lshl_b32 {sT3}, {sW}, 6')
    a(f's_add_u32 {sT2}, {sT2}, {sT3}')
    a(f's_add_u32 {sT2}, {sT2}, {WS_QLT}')
    a(f'v_lshlrev_b32 v7, 16, {vI}')
    a(f'v_lshl_add_u32 v7, {vG}, 4, v7')
    a(f'v_add_u32 v7, {sT2}, v7')
    a(f'v_and_b32 v6, 1, {vG}')
    a(f'v_lshlrev_b32 v6, 10, v6')
    a(f'v_lshrrev_b32 v5, 1, {vG}')
    a(f'v_lshl_add_u32 v6, v5, 8, v6')
    a(f'v_lshl_add_u32 v6, {vI}, 4, v6')
    a(f's_and_b32 {sT3}, {sCS}, 1')
    a(f's_lshl_b32 {sT3}, {sT3}, 1')
    a(f's_lshr_b32 {sT2}, {sW}, 1')
    a(f's_add_u32 {sT3}, {sT3}, {sT2}')
    a(f's_lshl_b32 {sT3}, {sT3}, 11')
    a(f's_lshl_b32 {sT4}, {sH}, 13')
    a(f's_add_u32 {sT4}, {sT4}, {sT3}')
    a(f's_and_b32 {sT3}, {sW}, 1')
    a(f's_lshl_b32 {sT3}, {sT3}, 9')
    a(f's_add_u32 {sT4}, {sT4}, {sT3}')
    a(f's_lshr_b32 {sT3}, {sCS}, 1')
    a(f's_lshl_b32 {sT3}, {sT3}, 6')
    a(f's_add_u32 {sT4}, {sT4}, {sT3}')
    a(f's_add_u32 {sT4}, {sT4}, {WS_QT}')
    a(f'v_lshlrev_b32 v5, 6, {vG}')
    a(f'v_lshl_add_u32 v5, {vI}, 4, v5')
    a(f's_lshl_b32 {sU0}, {sH}, 3')
    a(f's_add_u32 {sU0}, {sU0}, {sCS}')
    a(f's_lshl_b32 {sU0}, {sU0}, 10')
    a(f's_lshl_b32 {sT2}, {sW}, 8')
    a(f's_add_u32 {sU0}, {sU0}, {sT2}')
    a(f's_add_u32 {sU0}, {sU0}, {WS_HX}')
    nmask_on()
    a.vmem(f'buffer_store_dwordx4 {v(T,4)}, v6, {sWS}, {sT4} offen sc1', 'PRE')
    a.vmem(f'buffer_store_dwordx4 {v(T,4)}, v7, {sWS}, 0 offen sc1', 'PRE')
    exec_all()
    a(f's_mov_b32 s56, {sT4}')
    a(f's_add_u32 {sT4}, {sT4}, {WS_QTF - WS_QT}')
    a(f's_lshl_b32 {sT2}, {sH}, 13')
    a(f's_lshl_b32 {sT3}, {sW}, 11')
    a(f's_add_u32 {sT2}, {sT2}, {sT3}')
    a(f's_add_u32 {sT2}, {sT2}, {WS_QTF}')
    a.vmem(f'buffer_load_dwordx4 {v(RB+8,4)}, {vL16}, {sWS}, {sT2} offen sc1', 'PRE')
    a.vmem(f'buffer_load_dwordx4 {v(RB+12,4)}, {vL16}, {sWS}, {sT2} offen offset:1024 sc1', 'PRE')
    a(f'v_bfe_u32 v14, {vI}, 3, 1')
    a(f'v_and_b32 v15, 1, {vG}')
    a(f'v_lshl_add_u32 v14, v15, 1, v14')
    a(f'v_lshlrev_b32 v14, 5, v14')
    a(f's_lshl_b32 {sT2}, {sW}, 5')
    a(f'v_xor_b32 v14, {sT2}, v14')
    a(f'v_lshrrev_b32 v15, 2, {vI}')
    a(f'v_lshl_add_u32 v15, {vG}, 3, v15')
    a(f'v_lshl_add_u32 v14, v15, 7, v14')
    a(f'v_bfe_u32 v15, {vI}, 1, 1')
    a(f'v_lshl_add_u32 v14, v15, 4, v14')
    a(f'v_and_b32 v15, 1, {vI}')
    a(f'v_lshl_add_u32 v14, v15, 3, v14')
    a(f'v_add_u32 v16, {R16}, v14')
    a(f'v_add_u32 v17, {W1I}, v14')
    a(f'v_and_b32 v14, 3, {vI}')
    a(f'v_lshlrev_b32 v14, 10, v14')
    a(f'v_lshl_add_u32 v14, {vG}, 4, v14')
    a(f's_lshr_b32 {sT3}, {sCS}, 1')
    a(f's_lshl_b32 {sT3}, {sT3}, 8')
    a(f's_add_u32 {sT3}, {sT3}, {XS}')
    a(f'v_add_u32 v18, {sT3}, v14')
    a(f's_lshl_b32 {sT3}, {sCS}, 7')
    a(f's_add_u32 {sT3}, {sT3}, {XS}')
    a(f'v_add_u32 v19, {sT3}, v14')
    a('s_waitcnt lgkmcnt(0)')
    flush_stamps()
    nonce_finish()
    a(f's_lshl_b32 {sT2}, {sW}, 2')
    a(f's_add_u32 {sT2}, {sT2}, {SM_FLAG2}')
    a(f'v_mov_b32 v12, {sT2}')
    a(f'v_mov_b32 v13, {sNONCE}')
    a.wait_vm('X')
    stamp('wq')
    a('ds_write_b32 v12, v13')
    a(f'v_mov_b32 v12, {SM_FLAG2}')
    a(f's_mov_b32 {sSPIN}, 0')
    a.label('L_hsync')
    a(f'ds_read_b128 {v(RB,4)}, v12')
    a('s_waitcnt lgkmcnt(0)')
    a(f'v_xor_b32 v{RB}, {sNONCE}, v{RB}')
    for k in range(1, 4):
        a(f'v_xor_b32 v{RB+k}, {sNONCE}, v{RB+k}')
        a(f'v_or_b32 v{RB}, v{RB}, v{RB+k}')
    a(f'v_cmp_ne_u32 vcc, 0, v{RB}')
    a('s_cbranch_vccz L_hsynced')
    a(f's_add_u32 {sSPIN}, {sSPIN}, 1')
    a(f's_cmp_gt_u32 {sSPIN}, {spin_limit*16}')
    a('s_cbranch_scc0 L_hsync')
    a.label('L_hsynced')
    XB = RD; WF = RA; PAC = RF
    for ks in range(4):
        a(f'ds_read_b128 {v(XB+4*ks,4)}, v18 offset:{64*ks}')
        for hh in range(2):
            a(f'ds_read_b64_tr_b16 {v(WF+4*ks+2*hh,2)}, v16 offset:{ks*4096+hh*512}')
    QP = RB + 4
    a(f'v_mov_b32 v{QP+2}, {sNONCE}')
    a(f'v_mov_b32 v{QP+3}, {sNONCE}')
    WUKF = RC
    a(f's_mul_i32 {sT2}, {sW}, {4*CKV_STRIDE}')
    a(f's_add_u32 {sT2}, {sT2}, {UKI}')
    a(f'v_lshrrev_b32 v12, 2, {vI}')
    a(f'v_mul_u32_u24 v12, {CKV_STRIDE}, v12')
    a(f'v_and_b32 v13, 3, {vI}')
    a(f'v_lshl_add_u32 v12, v13, 8, v12')
    a(f'v_lshl_add_u32 v12, {vG}, 4, v12')
    a(f'v_add_u32 v12, {sT2}, v12')
    a(f'v_lshlrev_b32 v13, 6, v13')
    for ks in range(4):
        a(f's_waitcnt lgkmcnt({3*(3-ks)})')
        c = '0' if ks == 0 else v(PAC,4)
        a(f'v_mfma_f32_16x16x32_bf16 {v(PAC,4)}, {v(WF+4*ks,4)}, {v(XB+4*ks,4)}, {c}')
    a(f'v_cvt_pk_bf16_f32 v{QP}, v{PAC}, v{PAC+1}')
    a(f'v_cvt_pk_bf16_f32 v{QP+1}, v{PAC+2}, v{PAC+3}')
    nmask_on()
    a(f'buffer_store_dwordx4 {v(QP,4)}, v6, {sWS}, {sT4} offen')
    exec_all()
    stamp('qpub')
    QA = RA
    a(f's_lshl_b32 {sT3}, {sH}, 13')
    a(f's_add_u32 {sT3}, {sT3}, {WS_QTF}')
    a(f's_add_u32 {sT4}, {sT3}, 4096')
    def q_loads():
        for ks in range(4):
            for j in range(2):
                a(f'buffer_load_dwordx4 {v(QA+8*ks+4*j,4)}, {vL16}, {sWS}, {sT3 if ks < 2 else sT4} offen offset:{((2*ks+j)&3)*1024} sc1')
    a('s_waitcnt vmcnt(5)')
    for ks in range(4):
        a(f'v_xor_b32 v14, {64*ks}, v13')
        a(f'v_add_u32 v14, v14, v12')
        a(f'ds_read_b128 {v(WUKF+4*ks,4)}, v14')
    q_loads()
    a(f's_lshl_b32 {sT2}, {sW}, 2')
    a(f's_add_u32 {sT2}, {sT2}, {SM_FLAG5}')
    a(f'v_mov_b32 v12, {sT2}')
    a(f'v_mov_b32 v13, {sNONCE}')
    a('s_waitcnt lgkmcnt(0)')
    a('ds_write_b32 v12, v13')
    a(f's_mov_b32 {sSPIN}, 0')
    stamp('qack')
    a.label('L_qcheck')
    a('s_waitcnt vmcnt(0)')
    a(f'v_xor_b32 v{T}, {sNONCE}, v{QA+2}')
    for k in range(1, 8):
        a(f'v_xor_b32 v{T+1}, {sNONCE}, v{QA+4*k+2}')
        a(f'v_or_b32 v{T}, v{T}, v{T+1}')
    a(f'v_cmp_ne_u32 vcc, 0, v{T}')
    a('s_cbranch_vccz L_qok')
    a(f's_add_u32 {sSPIN}, {sSPIN}, 1')
    a(f's_cmp_gt_u32 {sSPIN}, {spin_limit}')
    a('s_cbranch_scc1 L_qok')
    a(f's_cmp_lt_u32 {sSPIN}, {FASTTRY}')
    a('s_cbranch_scc1 L_qagain')
    a(f's_cmp_lg_u32 {sSPIN}, {FASTTRY}')
    a('s_cbranch_scc1 L_qflip')
    nmask_on()
    a(f'buffer_store_dwordx4 {v(QP,4)}, v6, {sWS}, s56 offen sc1')
    exec_all()
    a.label('L_qflip')
    a(f's_xor_b32 {sT3}, {sT3}, {WS_QT ^ WS_QTF}')
    a(f's_xor_b32 {sT4}, {sT4}, {WS_QT ^ WS_QTF}')
    if slp: a(f's_sleep {slp}')
    a.label('L_qagain')
    q_loads()
    a('s_branch L_qcheck')
    a.label('L_qok')
    stamp('qok')
    a(f's_cmp_ge_u32 {sSPIN}, {FASTTRY}')
    a('s_cbranch_scc1 L_qsdone')
    nmask_on()
    a(f'buffer_store_dwordx4 {v(QP,4)}, v6, {sWS}, s56 offen sc1')
    exec_all()
    a.label('L_qsdone')
    for ks in range(4):
        a(f'v_mov_b32 v{QA+8*ks+2}, v{QA+8*ks+4}')
        a(f'v_mov_b32 v{QA+8*ks+3}, v{QA+8*ks+5}')
    a(f's_mov_b32 {sT3}, {f2u(LOG2E / (128 ** 0.5)):#x}')
    for ks in range(4):
        c = '0' if ks == 0 else v(RF,4)
        a(f'v_mfma_f32_16x16x32_bf16 {v(RF,4)}, {v(WUKF+4*ks,4)}, {v(QA+8*ks,4)}, {c}')
    a(f'v_mov_b32 v{T+2}, {sNONCE}')
    a(f'v_mov_b32 v{T+3}, {sNONCE}')
    for rot in (4, 8):
        for r in range(4):
            a(f'v_add_f32_dpp v{RF+r}, v{RF+r}, v{RF+r} row_ror:{rot} row_mask:0xf bank_mask:0xf')
    for r in range(4):
        a(f'v_mul_f32 v{RF+r}, {sT3}, v{RF+r}')
    a(f'v_cvt_pk_bf16_f32 v{T}, v{RF}, v{RF+1}')
    a(f'v_cvt_pk_bf16_f32 v{T+1}, v{RF+2}, v{RF+3}')
    nmask_on()
    a(f'buffer_store_dwordx4 {v(T,4)}, v7, {sWS}, 0 offen sc1')
    exec_all()
    stamp('qlpub')
    a(f's_lshl_b32 {sT3}, {sCS}, 2')
    a(f's_add_u32 {sT3}, {sT3}, {sW}')
    a(f's_mul_i32 {sT3}, {sT3}, {16*2752}')
    a(f's_lshl_b32 {sT4}, {sFB}, 7')
    a(f's_add_u32 {sT3}, {sT3}, {sT4}')
    a(f's_cmp_eq_u32 {sBLKV}, 0')
    a(f's_cselect_b32 {sT3}, 0x7ff00000, {sT3}')
    a(f's_lshl_b32 {sT4}, {sW}, 11')
    a(f's_add_u32 m0, {sT4}, {W1I}')
    for k in range(4): a(f'v_mov_b32 v{RB+k}, -1')
    a(f'buffer_load_dwordx4 v4, {sW1}, {sT3} offen{NT} lds')
    a(f's_add_u32 {sT3}, {sT3}, {8*2752}')
    a(f's_add_u32 m0, m0, 1024')
    a('s_nop 0')
    a(f'buffer_load_dwordx4 v11, {sW1}, {sT3} offen{NT} lds')
    nmask_on()
    a(f'buffer_store_dwordx4 {v(RB,4)}, v5, {sWS}, {sU0} offen sc1')
    exec_all()
    a('s_waitcnt vmcnt(1)')
    a(f's_lshl_b32 {sT2}, {sW}, 2')
    a(f's_add_u32 {sT2}, {sT2}, {SM_FLAG4}')
    a(f'v_mov_b32 v12, {sT2}')
    a(f'v_mov_b32 v13, {sNONCE}')
    a('ds_write_b32 v12, v13')
    a(f'v_mov_b32 v12, {SM_FLAG4}')
    a(f's_mov_b32 {sSPIN}, 0')
    a.label('L_w1sync')
    a(f'ds_read_b128 {v(RB,4)}, v12')
    a('s_waitcnt lgkmcnt(0)')
    a(f'v_xor_b32 v{RB}, {sNONCE}, v{RB}')
    for k in range(1, 4):
        a(f'v_xor_b32 v{RB+k}, {sNONCE}, v{RB+k}')
        a(f'v_or_b32 v{RB}, v{RB}, v{RB+k}')
    a(f'v_cmp_ne_u32 vcc, 0, v{RB}')
    a('s_cbranch_vccz L_w1synced')
    a(f's_add_u32 {sSPIN}, {sSPIN}, 1')
    a(f's_cmp_gt_u32 {sSPIN}, {spin_limit*16}')
    a('s_cbranch_scc0 L_w1sync')
    a.label('L_w1synced')
    for ks in range(2):
        a(f'ds_read_b128 {v(XB+4*ks,4)}, v19 offset:{64*ks}')
        for hh in range(2):
            a(f'ds_read_b64_tr_b16 {v(WF+4*ks+2*hh,2)}, v17 offset:{ks*4096+hh*512}')
    for k in range(4):
        a(f's_mov_b32 s{76+k}, {0x07060500 | k:#x}')
    a(f'v_mov_b32 v{T+5}, {sNONCE}')
    for ks in range(2):
        a(f's_waitcnt lgkmcnt({3*(1-ks)})')
        c = '0' if ks == 0 else v(PAC,4)
        a(f'v_mfma_f32_16x16x32_bf16 {v(PAC,4)}, {v(WF+4*ks,4)}, {v(XB+4*ks,4)}, {c}')
    for r in range(4):
        a(f'v_perm_b32 v{RB+r}, v{PAC+r}, v{T+5}, s{76+r}')
    nmask_on()
    a(f'buffer_store_dwordx4 {v(RB,4)}, v5, {sWS}, {sU0} offen sc1')
    exec_all()
    a(f's_cmp_lg_u32 {sW}, 3')
    a('s_cbranch_scc1 L_nogate')
    GWR = RB; XG = RB + 4; Z = RB + 20
    srd_fin(sGW)
    a(f'buffer_load_dwordx4 {v(GWR,4)}, {vL16}, {sGW}, 0 offen')
    a(f'v_add_u32 v13, {XS}, {vL16}')
    for b in range(4):
        a(f'ds_read_b128 {v(XG+4*b,4)}, v13 offset:{1024*b}')
    for b in range(4): a(f'v_mov_b32 v{Z+b}, 0')
    a('s_waitcnt vmcnt(0) lgkmcnt(0)')
    for p in range(4):
        for b in range(4):
            a(f'v_dot2c_f32_bf16 v{Z+b}, v{XG+4*b+p}, v{GWR+p}')
    a(f'v_permlane32_swap_b32 v{Z}, v{Z+2}')
    a(f'v_permlane32_swap_b32 v{Z+1}, v{Z+3}')
    a(f'v_add_f32 v{Z}, v{Z}, v{Z+2}')
    a(f'v_add_f32 v{Z+1}, v{Z+1}, v{Z+3}')
    a(f'v_permlane16_swap_b32 v{Z}, v{Z+1}')
    a(f'v_add_f32 v{Z}, v{Z}, v{Z+1}')
    for rot in (8, 4, 2, 1):
        a(f'v_add_f32_dpp v{Z}, v{Z}, v{Z} row_ror:{rot} row_mask:0xf bank_mask:0xf')
    a(f's_mov_b32 {sT2}, {f2u(-LOG2E):#x}')
    a(f'v_mul_f32 v{Z}, {sT2}, v{Z}')
    a(f'v_exp_f32 v{Z}, v{Z}')
    a(f'v_add_f32 v{Z}, 1.0, v{Z}')
    a(f'v_rcp_f32 v{Z}, v{Z}')
    a(f'v_lshlrev_b32 v12, 2, {vG}')
    a(f'v_add_u32 v12, {SM_G}, v12')
    a(f'ds_write_b32 v12, v{Z}')
    a.label('L_nogate')
    if 'notouch' not in opts:
        srd_fin(sWO, sW2, sWUV, sB1, sOUT)
        a(f'v_mov_b32 v12, 0')
        a('s_mov_b64 exec, 1')
        a(f's_lshl_b32 {sT2}, {sCS}, 19')
        a(f's_lshl_b32 {sT3}, {sH}, 8')
        a(f's_add_u32 {sT2}, {sT2}, {sT3}')
        a(f'buffer_load_dword v254, v12, {sWUV}, {sT2} offen')
        a(f's_lshl_b32 {sT2}, {sH}, 17')
        a(f'buffer_load_dword v254, v12, {sWO}, {sT2} offen')
        a(f's_lshl_b32 {sT2}, {sFB}, 16')
        a(f'buffer_load_dword v254, v12, {sW2}, {sT2} offen')
        a(f'buffer_load_dword v254, v12, {sB1}, 0 offen')
        a(f's_lshl_b32 {sT2}, {sHG}, 21')
        a(f's_add_u32 {sT2}, {sT2}, {WS_PART}')
        a(f'buffer_load_dword v254, v12, {sWS}, {sT2} offen sc1')
        a(f's_add_u32 {sT2}, {sT2}, {(2<<20) - 64}')
        a(f'buffer_load_dword v254, v12, {sWS}, {sT2} offen sc1')
        exec_all()
    stamp('hdone')
    if diag: a('s_waitcnt lgkmcnt(0)'); flush_stamps()
    a.label('L_join')
    a.vm = []
    barrier('B3a', wait=False)
    if stop == 'P2':
        a('s_waitcnt vmcnt(0) lgkmcnt(0)')
        flush_stamps()
        a('s_branch L_fin')

    PQ = RE; CA = RD
    srd_fin(sOUT)
    a(f's_lshl_b32 {sT2}, {sB}, 5')
    a(f's_lshl_b32 {sT3}, {sHG}, 4')
    a(f's_add_u32 {sT2}, {sT2}, {sT3}')
    a(f's_lshl_b32 {sT2}, {sT2}, 11')
    a(f's_lshl_b32 {sT3}, {sW}, 8')
    a(f's_add_u32 {sT2}, {sT2}, {sT3}')
    a(f's_add_u32 {sT5}, {sT2}, {WS_QLT}')
    a(f'v_lshrrev_b32 v12, 2, {vL}')
    a(f'v_lshlrev_b32 v12, 11, v12')
    a(f'v_and_b32 v13, 3, {vL}')
    a(f'v_lshl_add_u32 v12, v13, 4, v12')
    def ql_loads():
        for u in range(4):
            a(f'buffer_load_dwordx4 {v(PQ+4*u,4)}, v12, {sWS}, {sT5} offen offset:{64*u} sc1')
    ql_loads()
    WUVR = RC; WOR = RC + 8; W2R = RC + 16
    srd_fin(sWO, sW2, sWUV, sB1)
    a(f'v_lshrrev_b32 v4, 4, v0')
    a(f'v_lshlrev_b32 v4, 13, v4')
    a(f'v_lshl_add_u32 v4, {vI}, 4, v4')
    a(f's_lshl_b32 s56, {sCS}, 19')
    a(f's_lshl_b32 {sT3}, {sH}, 8')
    a(f's_add_u32 s56, s56, {sT3}')
    a(f'v_lshrrev_b32 v5, 3, v0')
    a(f'v_lshlrev_b32 v5, 10, v5')
    a(f'v_and_b32 v6, 7, v0')
    a(f'v_lshl_add_u32 v5, v6, 4, v5')
    a(f's_lshl_b32 s57, {sH}, 17')
    a(f's_lshl_b32 {sT3}, {sCS}, 7')
    a(f's_add_u32 s57, s57, {sT3}')
    a(f's_lshl_b32 s58, {sFB}, 16')
    a(f's_add_u32 s58, s58, {sT3}')
    a(f's_lshl_b32 {sT2}, {sFB}, 7')
    a(f'v_lshl_add_u32 v9, {vL}, 1, {sT2}')
    a(f's_lshl_b32 {sU0}, {sHG}, 9')
    a(f's_add_u32 {sU0}, {sU0}, {WS_CLRF}')
    a(f'v_lshlrev_b32 v11, 3, {vL}')
    for k in range(4): a(f'v_mov_b32 v{RC+24+k}, -1')
    a(f's_lshl_b32 {sT2}, {sH}, 3')
    a(f's_add_u32 {sT2}, {sT2}, {sCS}')
    a(f's_lshl_b32 {sT2}, {sT2}, 11')
    a(f's_lshl_b32 {sT3}, {sW}, 8')
    a(f's_add_u32 {sT2}, {sT2}, {sT3}')
    a(f's_add_u32 {sT2}, {sT2}, {WS_PCTX}')
    a(f'v_lshlrev_b32 v18, 6, {vG}')
    a(f'v_lshl_add_u32 v18, {vI}, 4, v18')
    a(f'v_add_u32 v18, {sT2}, v18')
    a(f's_lshl_b32 {sT2}, {sCS}, 15')
    a(f's_and_b32 {sT3}, {sW}, 3')
    a(f's_lshl_b32 {sT3}, {sT3}, 13')
    a(f's_add_u32 {sT2}, {sT2}, {sT3}')
    a(f's_lshl_b32 {sT3}, {sH}, 6')
    a(f's_add_u32 {sT2}, {sT2}, {sT3}')
    a(f's_add_u32 {sT2}, {sT2}, {WS_POUT}')
    a(f'v_lshlrev_b32 v19, 11, {vG}')
    a(f'v_lshl_add_u32 v19, {vI}, 4, v19')
    a(f'v_add_u32 v19, {sT2}, v19')
    a(f's_lshl_b32 {sT2}, {sW}, 11')
    a(f's_add_u32 {sT2}, {sT2}, {R16}')
    a(f'v_bfe_u32 v13, {vL}, 1, 1')
    a(f'v_lshlrev_b32 v13, 8, v13')
    a(f'v_lshrrev_b32 v14, 2, {vL}')
    a(f'v_lshl_add_u32 v13, v14, 4, v13')
    a(f'v_and_b32 v14, 1, {vL}')
    a(f'v_lshl_add_u32 v13, v14, 3, v13')
    a(f'v_add_u32 v13, {sT2}, v13')
    a(f's_mul_i32 {sT2}, {sW}, {16*CKV_STRIDE}')
    a(f'v_mul_u32_u24 v14, {CKV_STRIDE}, {vI}')
    a(f'v_lshl_add_u32 v14, {vG}, 4, v14')
    a(f'v_add_u32 v14, {sT2}, v14')
    a(f's_mov_b32 {sSPIN}, 0')
    for ks in range(16):
        a(f'ds_read_b128 {v(CA+4*ks,4)}, v14 offset:{64*ks}')
    a('s_waitcnt vmcnt(0)')
    a.label('L_qlcheck')
    for u in range(4):
        a(f'v_cmp_ne_u32 s[{76+2*(u%2)}:{77+2*(u%2)}], {sNONCE}, v{PQ+4*u+2}')
        if u % 2 == 1:
            a(f's_or_b64 {sM0}, {sM0}, {sM1}')
            if u == 1: a(f's_mov_b64 vcc, {sM0}')
            else: a(f's_or_b64 vcc, vcc, {sM0}')
    a('s_cbranch_scc0 L_qlok')
    if 'noprobeql' in opts:
        a(f's_add_u32 {sSPIN}, {sSPIN}, 1')
        a(f's_cmp_gt_u32 {sSPIN}, {spin_limit}')
        a('s_cbranch_scc1 L_qlok')
        if slp: a(f's_sleep {slp}')
        ql_loads()
        a('s_waitcnt vmcnt(0)')
        a('s_branch L_qlcheck')
    a.label('L_qlprobe')
    a(f's_add_u32 {sSPIN}, {sSPIN}, 1')
    a(f's_cmp_gt_u32 {sSPIN}, {spin_limit}')
    a('s_cbranch_scc1 L_qlok')
    if slp: a(f's_sleep {slp}')
    a('s_mov_b32 exec_lo, 0x11111111'); a('s_mov_b32 exec_hi, 0x11111111')
    a(f'buffer_load_dword v{T}, v12, {sWS}, {sT5} offen offset:{192+8} sc1')
    a('s_waitcnt vmcnt(0)')
    a(f'v_cmp_ne_u32 vcc, {sNONCE}, v{T}')
    exec_all()
    a('s_cbranch_vccnz L_qlprobe')
    ql_loads()
    a('s_waitcnt vmcnt(0)')
    a('s_branch L_qlcheck')
    a.label('L_qlok')
    stamp('qlok')
    for u in range(4):
        a(f'ds_write_b64 v13, {v(PQ+4*u,2)} offset:{(u>>1)*1024+(u&1)*512}')
    barrier('B3')
    FR = RB; SAC = RF
    a(f'v_add_u32 v12, {R16}, {vL16}')
    for ks in range(8):
        a(f'ds_read_b128 {v(FR+4*ks,4)}, v12 offset:{1024*ks}')
    for ks in range(16):
        issued = min(16, ks + 8)
        a(f's_waitcnt lgkmcnt({issued-1-ks})')
        c = '0' if ks == 0 else v(SAC,4)
        a(f'v_mfma_f32_16x16x32_bf16 {v(SAC,4)}, {v(CA+4*ks,4)}, {v(FR+4*(ks%8),4)}, {c}')
        if ks + 8 < 16:
            a(f'ds_read_b128 {v(FR+4*(ks%8),4)}, v12 offset:{1024*(ks+8)}')
    def tail_loads():
        a.vmem(f'buffer_load_dwordx4 {v(WUVR,4)}, v4, {sWUV}, s56 offen{NT}', 'TW')
        a(f's_add_u32 s56, s56, {32*8192}')
        a.vmem(f'buffer_load_dwordx4 {v(WOR,4)}, v5, {sWO}, s57 offen{NT}', 'TW')
        a(f's_add_u32 s57, s57, {64*1024}')
        a.vmem(f'buffer_load_dwordx4 {v(WUVR+4,4)}, v4, {sWUV}, s56 offen{NT}', 'TW')
        a.vmem(f'buffer_load_dwordx4 {v(WOR+4,4)}, v5, {sWO}, s57 offen{NT}', 'TW')
        a.vmem(f'buffer_load_dwordx4 {v(W2R,4)}, v5, {sW2}, s58 offen{NT}', 'TW')
        a.vmem(f'buffer_load_ushort v9, v9, {sB1}, 0 offen', 'TW')
        nmask_on()
        a.vmem(f'buffer_store_dwordx4 {v(RC+24,4)}, v18, {sWS}, 0 offen sc1', 'PT')
        a.vmem(f'buffer_store_dwordx4 {v(RC+24,4)}, v19, {sWS}, 0 offen sc1', 'PT')
        a(f's_mov_b32 s57, {WS_PCTXF - WS_PCTX}')
        a.vmem(f'buffer_load_dwordx4 {v(RC+28,4)}, v18, {sWS}, s57 offen sc1', 'PT')
        exec_all()
    a.vm = []
    a.vmem(f'buffer_load_dwordx2 {v(RC+20,2)}, v11, {sWS}, {sU0} offen sc1', 'CF')
    if 'twlate' not in opts: tail_loads()
    a(f'v_bfe_u32 v13, {vL}, 2, 2')
    a(f'v_lshl_add_u32 v13, {vG}, 2, v13')
    a(f'v_mul_u32_u24 v13, {CKV_STRIDE}, v13')
    a(f'v_and_b32 v14, 3, {vL}')
    a(f'v_lshl_add_u32 v13, v14, 3, v13')
    a(f's_lshl_b32 {sT2}, {sW}, 7')
    a(f'v_add_u32 v13, {sT2}, v13')
    a(f'v_add_u32 v14, {64*CKV_STRIDE}, v13')
    a(f'v_max3_f32 v{T}, v{SAC}, v{SAC+1}, v{SAC+2}')
    a(f'v_max_f32 v{T}, v{T}, v{SAC+3}')
    a(f'v_mov_b32 v{T+1}, v{T}')
    a(f'v_permlane16_swap_b32 v{T}, v{T+1}')
    a(f'v_max_f32 v{T}, v{T}, v{T+1}')
    a(f'v_mov_b32 v{T+1}, v{T}')
    a(f'v_permlane32_swap_b32 v{T}, v{T+1}')
    a(f'v_max_f32 v{T}, v{T}, v{T+1}')
    a(f's_lshl_b32 {sT2}, {sW}, 2')
    a(f's_add_u32 {sT2}, {sT2}, {SM_MAX}')
    a(f'v_lshl_add_u32 v12, {vI}, 5, {sT2}')
    a(f'ds_write_b32 v12, v{T}')
    def tr_reads(s):
        base = 'v13' if s < 2 else 'v14'
        for t in range(4):
            for hh in range(2):
                off = (s % 2) * 32 * CKV_STRIDE + hh * 16 * CKV_STRIDE + t * 32
                a(f'ds_read_b64_tr_b16 {v(CA+16*s+4*t+2*hh,2)}, {base} offset:{off}')
    tr_reads(0)
    barrier('B4')
    a(f'v_lshlrev_b32 v12, 5, {vI}')
    a(f'v_add_u32 v12, {SM_MAX}, v12')
    a(f'ds_read_b128 {v(PQ,4)}, v12')
    a(f'ds_read_b128 {v(PQ+4,4)}, v12 offset:16')
    tr_reads(1)
    a(f's_lshr_b32 {sT2}, {sW}, 1')
    a(f's_lshl_b32 {sT2}, {sT2}, 10')
    a(f's_and_b32 {sT3}, {sW}, 1')
    a(f's_lshl_b32 {sT3}, {sT3}, 3')
    a(f's_add_u32 {sT2}, {sT2}, {sT3}')
    a(f's_add_u32 {sT2}, {sT2}, {SM_P}')
    a(f'v_add_u32 v12, {sT2}, {vL16}')
    a('s_waitcnt lgkmcnt(8)')
    MX = T + 4
    a(f'v_max3_f32 v{T}, v{PQ}, v{PQ+1}, v{PQ+2}')
    a(f'v_max3_f32 v{T+1}, v{PQ+3}, v{PQ+4}, v{PQ+5}')
    a(f'v_max3_f32 v{T}, v{T}, v{PQ+6}, v{PQ+7}')
    a(f'v_max_f32 v{MX}, v{T}, v{T+1}')
    for r in range(4): a(f'v_sub_f32 v{SAC+r}, v{SAC+r}, v{MX}')
    for r in range(4): a(f'v_exp_f32 v{SAC+r}, v{SAC+r}')
    a(f'v_cvt_pk_bf16_f32 v{T}, v{SAC}, v{SAC+1}')
    a(f'v_cvt_pk_bf16_f32 v{T+1}, v{SAC+2}, v{SAC+3}')
    a(f'ds_write_b64 v12, {v(T,2)}')
    barrier('B5')
    OAC = RF; LAC = RF + 16
    a(f'v_add_u32 v12, {SM_P}, {vL16}')
    for s in range(4):
        a(f'ds_read_b128 {v(PQ+4*s,4)}, v12 offset:{1024*s}')
    tr_reads(2)
    ONES = FR
    for r in range(4): a(f'v_mov_b32 v{ONES+r}, 0x3f803f80')
    for s in range(4):
        a(f's_waitcnt lgkmcnt({[11, 10+8, 8, 0][s] if s != 1 else 15})' if False else f's_waitcnt lgkmcnt({[11, 15, 8, 0][s]})')
        if s == 1: a('s_waitcnt lgkmcnt(14)')
        for t in range(4):
            c = '0' if s == 0 else v(OAC+4*t,4)
            a(f'v_mfma_f32_16x16x32_bf16 {v(OAC+4*t,4)}, {v(CA+16*s+4*t,4)}, {v(PQ+4*s,4)}, {c}')
        c = '0' if s == 0 else v(LAC,4)
        a(f'v_mfma_f32_16x16x32_bf16 {v(LAC,4)}, {v(ONES,4)}, {v(PQ+4*s,4)}, {c}')
        if s == 0: tr_reads(3)
    a(f's_lshl_b32 {sT2}, {sHG}, 21')
    a(f's_lshl_b32 {sT3}, {sW}, 14')
    a(f's_add_u32 {sT2}, {sT2}, {sT3}')
    a(f's_lshl_b32 {sT3}, {sB}, 5')
    a(f's_add_u32 {sT3}, {sT3}, {sSP}')
    a(f's_lshl_b32 {sT5}, {sT3}, 7')
    a(f's_add_u32 {sT2}, {sT2}, {sT5}')
    a(f's_add_u32 {sT2}, {sT2}, {WS_PART}')
    a(f'v_lshrrev_b32 v12, 3, {vL}')
    a(f'v_lshlrev_b32 v12, 17, v12')
    a(f'v_and_b32 v13, 7, {vL}')
    a(f'v_lshl_add_u32 v12, v13, 4, v12')
    a(f's_add_u32 {sT4}, {sT2}, {8*131072}')
    a(f's_lshl_b32 {sT1}, {sW}, 11')
    a(f's_add_u32 {sT1}, {sT1}, {R16}')
    a(f'v_lshrrev_b32 v14, 1, {vG}')
    a(f'v_and_b32 v15, 7, {vI}')
    a(f'v_xor_b32 v14, v14, v15')
    a(f'v_lshlrev_b32 v14, 4, v14')
    a(f'v_lshlrev_b32 v15, 7, {vI}')
    a(f'v_and_b32 v16, 1, {vG}')
    a(f'v_lshl_add_u32 v15, v16, 3, v15')
    a(f'v_add_u32 v15, {sT1}, v15')
    a(f'v_lshrrev_b32 v16, 3, {vL}')
    a(f'v_and_b32 v17, 7, {vL}')
    a(f'v_xor_b32 v17, v17, v16')
    a(f'v_lshlrev_b32 v17, 4, v17')
    a(f'v_lshl_add_u32 v17, v16, 7, v17')
    a(f'v_add_u32 v17, {sT1}, v17')
    a(f's_lshl_b32 {sT3}, {sT3}, 3')
    a(f's_lshl_b32 {sT5}, {sHG}, 14')
    a(f's_add_u32 {sT3}, {sT3}, {sT5}')
    a(f's_add_u32 {sT3}, {sT3}, {WS_STATS}')
    a(f'v_lshlrev_b32 v13, 10, {vI}')
    O = FR + 8
    for t in range(4):
        a(f'v_cvt_pk_bf16_f32 v{O+2*t}, v{OAC+4*t}, v{OAC+4*t+1}')
        a(f'v_cvt_pk_bf16_f32 v{O+2*t+1}, v{OAC+4*t+2}, v{OAC+4*t+3}')
        a(f'v_xor_b32 v16, {32*t}, v14')
        a(f'v_add_u32 v16, v16, v15')
        a(f'ds_write_b64 v16, {v(O+2*t,2)}')
    a('s_waitcnt lgkmcnt(0)')
    for u in range(2):
        a(f'ds_read_b128 {v(O+4*u,4)}, v17 offset:{1024*u}')
    a.wait_vm('CF')
    a(f's_mov_b32 {sSPIN}, 0')
    a.label('L_cfcheck')
    a(f'v_cmp_ne_u32 {sM0}, {sNONCE}, v{RC+20}')
    a(f'v_cmp_ne_u32 {sM1}, {sNONCE}, v{RC+21}')
    a(f's_or_b64 vcc, {sM0}, {sM1}')
    a('s_cbranch_scc0 L_cfok')
    a(f's_add_u32 {sSPIN}, {sSPIN}, 1')
    a(f's_cmp_gt_u32 {sSPIN}, {spin_limit}')
    a('s_cbranch_scc1 L_cfok')
    if slp: a(f's_sleep {slp}')
    a(f'buffer_load_dwordx2 {v(RC+20,2)}, v11, {sWS}, {sU0} offen sc1')
    a('s_waitcnt vmcnt(0)')
    a('s_branch L_cfcheck')
    a.label('L_cfok')
    for u in range(2):
        a(f's_waitcnt lgkmcnt({1-u})')
        a.vmem(f'buffer_store_dwordx4 {v(O+4*u,4)}, v12, {sWS}, {sT2 if u == 0 else sT4} offen sc1', 'PARTST')
    a(f'v_mov_b32 v{T}, v{MX}')
    a(f'v_mov_b32 v{T+1}, v{LAC}')
    a(f's_lshl_b32 {sT5}, {sW}, 1')
    a(f's_lshl_b64 {sM0}, 3, {sT5}')
    a(f's_mov_b64 exec, {sM0}')
    a.vmem(f'buffer_store_dwordx2 {v(T,2)}, v13, {sWS}, {sT3} offen sc1', 'PARTST')
    exec_all()
    stamp('partpub')
    if 'twlate' in opts: tail_loads()
    if stop == 'P3':
        a('s_waitcnt vmcnt(0) lgkmcnt(0)')
        flush_stamps()
        a('s_branch L_fin')

    a(f'v_lshrrev_b32 v12, 4, v0')
    a(f'v_and_b32 v13, 3, v12')
    a(f'v_bfe_u32 v14, v12, 3, 1')
    a(f'v_lshl_add_u32 v13, v14, 2, v13')
    a(f'v_lshlrev_b32 v13, 1, v13')
    a(f'v_xor_b32 v13, v13, {vI}')
    a(f'v_lshlrev_b32 v13, 4, v13')
    a(f'v_lshl_add_u32 v16, v12, 8, v13')
    a(f'v_lshrrev_b32 v13, 3, v0')
    a(f'v_bfe_u32 v14, v13, 1, 1')
    a(f'v_bfe_u32 v15, v13, 3, 1')
    a(f'v_lshl_add_u32 v14, v15, 1, v14')
    a(f'v_lshlrev_b32 v14, 1, v14')
    a(f'v_and_b32 v15, 7, v0')
    a(f'v_xor_b32 v14, v14, v15')
    a(f'v_lshlrev_b32 v14, 4, v14')
    a(f'v_lshl_add_u32 v17, v13, 7, v14')
    barrier('B5b')
    a(f's_cmp_lg_u32 {sW}, 7')
    a('s_cbranch_scc1 L_nozero')
    a(f'v_mov_b32 v{T}, 0')
    a(f'v_lshlrev_b32 v12, 2, {vL}')
    a(f'v_add_u32 v12, {SM_ZERO}, v12')
    a('s_mov_b64 exec, 0xffffffff')
    a(f'ds_write_b32 v12, v{T}')
    exec_all()
    a.label('L_nozero')
    a(f's_cmp_eq_u32 {sBLKV}, 0')
    a('s_cbranch_scc1 L_hxdone')
    a(f's_lshl_b32 {sT2}, {sH}, 3')
    a(f's_add_u32 {sT2}, {sT2}, {sW}')
    a(f's_lshl_b32 {sT2}, {sT2}, 10')
    a(f's_add_u32 {sT2}, {sT2}, {WS_HX}')
    a(f's_mov_b32 {sT5}, 0x0c0c0400')
    a(f's_mov_b32 {sT4}, 0x04000c0c')
    a(f's_mov_b32 {sSPIN}, 0')
    a.label('L_hxpoll')
    a(f'buffer_load_dwordx4 {v(RE,4)}, {vL16}, {sWS}, {sT2} offen sc1')
    a('s_waitcnt vmcnt(0)')
    a(f'v_perm_b32 v{T}, v{RE+1}, v{RE}, {sT5}')
    a(f'v_perm_b32 v{T+1}, v{RE+3}, v{RE+2}, {sT4}')
    a(f'v_or_b32 v{T}, v{T}, v{T+1}')
    a(f'v_cmp_ne_u32 vcc, {sNONCE}, v{T}')
    a('s_cbranch_vccz L_hxok')
    spin_tail('L_hxpoll', 'L_hxok')
    a.label('L_hxok')
    a(f's_mov_b32 {sT3}, 0xffffff00')
    for k in range(4): a(f'v_and_b32 v{RE+k}, {sT3}, v{RE+k}')
    a(f's_lshl_b32 {sT2}, {sW}, 10')
    a(f's_add_u32 {sT2}, {sT2}, {HRED}')
    a(f'v_add_u32 v12, {sT2}, {vL16}')
    a(f'ds_write_b128 v12, {v(RE,4)}')
    a.label('L_hxdone')
    a(f's_lshl_b32 {sT2}, {sW}, 11')
    a(f's_add_u32 {sT2}, {sT2}, {sINB}')
    a(f's_lshr_b32 {sT3}, {sW}, 1')
    a(f's_lshl_b32 {sT3}, {sT3}, 8')
    a(f's_lshl_b32 {sT5}, {sH}, 10')
    a(f's_add_u32 {sT3}, {sT3}, {sT5}')
    a(f's_add_u32 {sT3}, {sT3}, {WS_STATS}')
    a(f's_and_b32 {sT5}, {sW}, 1')
    a(f's_lshl_b32 {sT5}, {sT5}, 7')
    a(f'v_lshrrev_b32 v12, 3, {vL}')
    a(f'v_lshlrev_b32 v12, 3, v12')
    a(f'v_xor_b32 v13, 128, v12')
    a(f'v_xor_b32 v12, {sT5}, v12')
    a(f'v_xor_b32 v13, {sT5}, v13')
    a(f'v_lshlrev_b32 v14, 3, {vL}')
    D = RE; ST = RE + 8
    a(f's_mov_b32 {sSPIN}, 0')
    a('s_waitcnt vmcnt(0)'); a.vm = []
    stamp('partack')
    for k in range(2): a(f'ds_write_b128 v16, {v(WUVR+4*k,4)} offset:{UVI+8192*k}')
    for k in range(2): a(f'ds_write_b128 v17, {v(WOR+4*k,4)} offset:{WOI+8192*k}')
    a(f'ds_write_b128 v17, {v(W2R,4)} offset:{W2I}')
    if 'noprobepart' in opts: a('s_branch L_partfull')
    a.label('L_partprobe')
    a('s_mov_b64 exec, 0xffffffff')
    a(f'buffer_load_dword v{T}, v14, {sWS}, {sT3} offen offset:4 sc1')
    a('s_waitcnt vmcnt(0)')
    a(f'v_cmp_eq_u32 vcc, -1, v{T}')
    exec_all()
    a('s_cbranch_vccz L_partfull')
    spin_tail('L_partprobe', 'L_partfull')
    a.label('L_partfull')
    for i in range(2):
        a(f'buffer_load_dwordx4 {v(D+4*i,4)}, {vL16}, {sWS}, {sT2} offen offset:{1024*i} sc1')
    for i in range(2):
        a(f'buffer_load_dwordx2 {v(ST+2*i,2)}, v12, {sWS}, {sT3} offen offset:{64*i} sc1')
    for i in range(2):
        a(f'buffer_load_dwordx2 {v(ST+4+2*i,2)}, v13, {sWS}, {sT3} offen offset:{64*i} sc1')
    a('s_waitcnt vmcnt(0)')
    a(f'v_max3_u32 v{T}, v{D}, v{D+1}, v{D+2}')
    a(f'v_max3_u32 v{T+1}, v{D+3}, v{D+4}, v{D+5}')
    a(f'v_max3_u32 v{T+2}, v{D+6}, v{D+7}, v{ST}')
    a(f'v_max3_u32 v{T+3}, v{ST+1}, v{ST+2}, v{ST+3}')
    a(f'v_max3_u32 v{T}, v{T}, v{ST+4}, v{ST+5}')
    a(f'v_max3_u32 v{T+1}, v{T+1}, v{ST+6}, v{ST+7}')
    a(f'v_max3_u32 v{T}, v{T}, v{T+1}, v{T+2}')
    a(f'v_max_u32 v{T}, v{T}, v{T+3}')
    a(f'v_cmp_eq_u32 vcc, -1, v{T}')
    a('s_cbranch_vccz L_partok')
    spin_tail('L_partfull', 'L_partok')
    a.label('L_partok')
    stamp('partok')
    def allred(op, x, t):
        a(f'{op}_dpp v{x}, v{x}, v{x} row_ror:8 row_mask:0xf bank_mask:0xf')
        a(f'v_mov_b32 v{t}, v{x}')
        a(f'v_permlane16_swap_b32 v{x}, v{t}')
        a(f'{op} v{x}, v{x}, v{t}')
        a(f'v_mov_b32 v{t}, v{x}')
        a(f'v_permlane32_swap_b32 v{x}, v{t}')
        a(f'{op} v{x}, v{x}, v{t}')
    M = T
    a(f'v_max3_f32 v{M}, v{ST}, v{ST+2}, v{ST+4}')
    a(f'v_max_f32 v{M}, v{M}, v{ST+6}')
    allred('v_max_f32', M, T+1)
    for i in range(4): a(f'v_sub_f32 v{ST+2*i}, v{ST+2*i}, v{M}')
    for i in range(4): a(f'v_exp_f32 v{ST+2*i}, v{ST+2*i}')
    Lr = T + 1
    a(f'v_mul_f32 v{Lr}, v{ST}, v{ST+1}')
    for i in range(1, 4): a(f'v_fmac_f32 v{Lr}, v{ST+2*i}, v{ST+2*i+1}')
    AC = RB + 16; UN = RB + 24
    for k in range(4):
        a(f'v_lshlrev_b32 v{UN+2*k}, 16, v{D+k}')
        a(f'v_and_b32 v{UN+2*k+1}, 0xffff0000, v{D+k}')
    allred('v_add_f32', Lr, T+2)
    a(f'v_rcp_f32 v{Lr}, v{Lr}')
    a('s_nop 0')
    a(f'v_mul_f32 v{ST}, v{ST}, v{Lr}')
    a(f'v_mul_f32 v{ST+2}, v{ST+2}, v{Lr}')
    for e in range(8): a(f'v_mul_f32 v{AC+e}, v{ST}, v{UN+e}')
    for k in range(4):
        a(f'v_lshlrev_b32 v{UN+2*k}, 16, v{D+4+k}')
        a(f'v_and_b32 v{UN+2*k+1}, 0xffff0000, v{D+4+k}')
    for e in range(8): a(f'v_fmac_f32 v{AC+e}, v{ST+2}, v{UN+e}')
    for k in range(4): a(f'v_permlane32_swap_b32 v{AC+k}, v{AC+k+4}')
    for k in range(4): a(f'v_add_f32 v{AC+k}, v{AC+k}, v{AC+k+4}')
    for k in range(2): a(f'v_permlane16_swap_b32 v{AC+k}, v{AC+k+2}')
    for k in range(2): a(f'v_add_f32 v{AC+k}, v{AC+k}, v{AC+k+2}')
    for k in range(2):
        a(f'v_add_f32_dpp v{AC+k}, v{AC+k}, v{AC+k} row_ror:8 row_mask:0xf bank_mask:0xf')
    a(f'v_and_b32 v{T}, 8, {vL}')
    a(f'v_cmp_eq_u32 vcc, 0, v{T}')
    a(f'v_cndmask_b32 v{AC}, v{AC+1}, v{AC}, vcc')
    a(f'v_cvt_pk_bf16_f32 v{AC}, v{AC}, v{AC}')
    a(f'v_and_b32 v12, 7, {vL}')
    a(f'v_lshlrev_b32 v12, 3, v12')
    a(f'v_bfe_u32 v13, {vL}, 3, 1')
    a(f'v_add_u32 v12, v12, v13')
    a(f'v_lshl_add_u32 v12, {vG}, 1, v12')
    a(f's_lshl_b32 {sT2}, {sW}, 7')
    a(f's_add_u32 {sT2}, {sT2}, {SM_CLP}')
    a(f'v_lshl_add_u32 v12, v12, 1, {sT2}')
    a(f'ds_write_b16 v12, v{AC}')
    a(f'v_lshrrev_b32 v13, 2, {vI}')
    a(f'v_and_b32 v14, 1, {vG}')
    a(f'v_lshl_add_u32 v14, v14, 2, v13')
    a(f'v_lshlrev_b32 v14, 1, v14')
    a(f'v_bfe_u32 v15, {vI}, 1, 1')
    a(f's_lshl_b32 {sT2}, {sW}, 1')
    a(f'v_add_u32 v15, {sT2}, v15')
    a(f'v_xor_b32 v14, v14, v15')
    a(f'v_lshlrev_b32 v14, 4, v14')
    a(f'v_and_b32 v15, 1, {vI}')
    a(f'v_lshl_add_u32 v14, v15, 3, v14')
    a(f'v_lshl_add_u32 v13, {vG}, 3, v13')
    a(f'v_lshl_add_u32 v14, v13, 8, v14')
    a(f'v_and_b32 v12, 3, {vI}')
    a(f'v_bfe_u32 v13, {vI}, 2, 1')
    a(f'v_lshl_add_u32 v12, v12, 1, v13')
    a(f'v_lshlrev_b32 v12, 7, v12')
    a(f'v_lshl_add_u32 v12, {vG}, 4, v12')
    a(f'v_add_u32 v12, {SM_CLP}, v12')
    a(f'v_and_b32 v13, 3, {vI}')
    a(f'v_lshlrev_b32 v13, 2, v13')
    a(f'v_add_u32 v13, {SM_G}, v13')
    barrier('B6')
    UVF = RF; CLF = RE; SAC2 = RF + 8
    for ks in range(2):
        for hh in range(2):
            a(f'ds_read_b64_tr_b16 {v(UVF+4*ks+2*hh,2)}, v14 offset:{UVI+ks*8192+hh*1024}')
    for ks in range(2):
        a(f'ds_read_b128 {v(CLF+4*ks,4)}, v12 offset:{ks*64}')
    a(f'ds_read_b32 v{T+4}, v13')
    for k in range(4):
        a(f's_mov_b32 s{76+k}, {0x07060500 | k:#x}')
    a(f'v_mov_b32 v{T+5}, {sNONCE}')
    for ks in range(2):
        a(f's_waitcnt lgkmcnt({2-ks})')
        c = '0' if ks == 0 else v(SAC2,4)
        a(f'v_mfma_f32_16x16x32_bf16 {v(SAC2,4)}, {v(UVF+4*ks,4)}, {v(CLF+4*ks,4)}, {c}')
    a(f'v_bfe_u32 v14, {vI}, 3, 1')
    a(f'v_and_b32 v15, 1, {vG}')
    a(f'v_lshl_add_u32 v14, v15, 1, v14')
    a(f'v_lshlrev_b32 v14, 1, v14')
    a(f's_and_b32 {sT2}, {sW}, 3')
    a(f's_lshl_b32 {sT2}, {sT2}, 1')
    a(f'v_bfe_u32 v15, {vI}, 1, 1')
    a(f'v_add_u32 v15, {sT2}, v15')
    a(f'v_xor_b32 v14, v14, v15')
    a(f'v_lshlrev_b32 v14, 4, v14')
    a(f'v_and_b32 v15, 1, {vI}')
    a(f'v_lshl_add_u32 v14, v15, 3, v14')
    a(f'v_lshrrev_b32 v15, 2, {vI}')
    a(f'v_lshl_add_u32 v15, {vG}, 3, v15')
    a(f'v_lshl_add_u32 v14, v15, 7, v14')
    a('s_waitcnt lgkmcnt(0)')
    for r in range(4):
        a(f'v_add_f32_dpp v{SAC2+r}, v{SAC2+r}, v{SAC2+r} row_ror:4 row_mask:0xf bank_mask:0xf')
    for r in range(4): a(f'v_mul_f32 v{SAC2+r}, v{T+4}, v{SAC2+r}')
    CP = RB + 8
    for r in range(4): a(f'v_perm_b32 v{CP+r}, v{SAC2+r}, v{T+5}, s{76+r}')
    a(f's_mov_b32 s57, {WS_PCTXF - WS_PCTX}')
    nmask_on()
    a(f'buffer_store_dwordx4 {v(CP,4)}, v18, {sWS}, s57 offen')
    exec_all()
    stamp('pctxpub')
    WOF = RA; W2F = RA + 16
    for ks in range(4):
        for hh in range(2):
            a(f'ds_read_b64_tr_b16 {v(WOF+4*ks+2*hh,2)}, v14 offset:{WOI+ks*4096+hh*512}')
    for ks in range(2):
        for hh in range(2):
            a(f'ds_read_b64_tr_b16 {v(W2F+4*ks+2*hh,2)}, v14 offset:{W2I+ks*4096+hh*512}')
    a(f's_cmp_ge_u32 {sW}, 4')
    a('s_cbranch_scc1 L_noact')
    H = RB + 16
    a(f'v_mov_b32 v{H+5}, 0')
    a(f's_cmp_eq_u32 {sBLKV}, 0')
    a('s_cbranch_scc1 L_actw')
    a(f's_lshl_b32 {sT2}, {sW}, 4')
    a(f's_add_u32 {sT2}, {sT2}, {HRED}')
    a(f'v_lshrrev_b32 v12, 2, {vL}')
    a(f'v_lshlrev_b32 v12, 6, v12')
    a(f'v_and_b32 v13, 3, {vL}')
    a(f'v_lshl_add_u32 v12, v13, 2, v12')
    a(f'v_add_u32 v12, {sT2}, v12')
    for k in range(4):
        a(f'ds_read2st64_b32 {v(H+8+2*k,2)}, v12 offset0:{8*k} offset1:{8*k+4}')
    a(f's_lshl_b32 {sT2}, {sW}, 2')
    a(f's_add_u32 {sT2}, {sT2}, {SM_G}')
    a(f'v_mov_b32 v13, {sT2}')
    a(f'ds_read_b32 v{H+1}, v13')
    a(f'v_lshlrev_b32 v9, 16, v9')
    a(f's_mov_b32 {sT2}, {f2u(-LOG2E):#x}')
    a('s_waitcnt lgkmcnt(0)')
    a(f'v_add_f32 v{H+8}, v{H+8}, v{H+9}')
    a(f'v_add_f32 v{H+10}, v{H+10}, v{H+11}')
    a(f'v_add_f32 v{H+12}, v{H+12}, v{H+13}')
    a(f'v_add_f32 v{H+14}, v{H+14}, v{H+15}')
    a(f'v_add_f32 v{H+8}, v{H+8}, v{H+10}')
    a(f'v_add_f32 v{H+12}, v{H+12}, v{H+14}')
    a(f'v_add_f32 v{H+8}, v{H+8}, v{H+12}')
    a(f'v_add_f32 v{H}, v{H+8}, v9')
    a(f'v_mul_f32_e64 v{H+3}, {sT2}, abs(v{H})')
    a(f'v_exp_f32 v{H+3}, v{H+3}')
    a(f'v_add_f32 v{H+4}, v{H+3}, v{H+3}')
    a(f'v_add_f32 v{H+5}, 1.0, v{H+4}')
    a(f'v_fma_f32 v{H+6}, v{H+3}, v{H+3}, v{H+4}')
    a(f'v_mul_f32 v{H+7}, v{H+3}, v{H+4}')
    a(f'v_cmp_le_f32 vcc, 0, v{H}')
    a(f'v_cndmask_b32 v{H+5}, v{H+6}, v{H+5}, vcc')
    a(f'v_cndmask_b32 v{H+7}, 2.0, v{H+7}, vcc')
    a(f'v_add_f32 v{H+7}, v{H+5}, v{H+7}')
    a(f'v_rcp_f32 v{H+7}, v{H+7}')
    a(f'v_mul_f32 v{H+5}, v{H+5}, v{H}')
    a(f'v_mul_f32 v{H+5}, v{H+5}, v{H+7}')
    a(f'v_sub_f32 v{H+1}, 1.0, v{H+1}')
    a(f'v_mul_f32 v{H+5}, v{H+5}, v{H+1}')
    a(f's_lshl_b32 {sT2}, {sFB}, 6')
    a(f'v_add_u32 v13, {sT2}, {vL}')
    a(f'v_cmp_gt_u32 vcc, 1376, v13')
    a(f'v_cndmask_b32 v{H+5}, 0, v{H+5}, vcc')
    a(f'v_cvt_pk_bf16_f32 v{H+5}, v{H+5}, v{H+5}')
    a.label('L_actw')
    a(f's_lshl_b32 {sT2}, {sW}, 7')
    a(f's_add_u32 {sT2}, {sT2}, {SM_ACT}')
    a(f'v_lshl_add_u32 v12, {vL}, 1, {sT2}')
    a(f'ds_write_b16 v12, v{H+5}')
    a.label('L_noact')
    if stop == 'T1a':
        a('s_waitcnt vmcnt(0) lgkmcnt(0)')
        flush_stamps()
        a('s_branch L_fin')
    a(f's_lshl_b32 {sT2}, {sH}, 14')
    a(f's_add_u32 {sT2}, {sT2}, {WS_PCTXF}')
    a(f's_add_u32 {sT3}, {sT2}, 8192')
    a(f'v_lshlrev_b32 v12, 4, v0')
    a(f's_mov_b32 {sT5}, 0x0c0c0400')
    a(f's_mov_b32 {sU0}, 0x04000c0c')
    a(f's_mov_b32 {sSPIN}, 0')
    PQ = RE
    stamp('pctxack')
    a.label('L_pctxpoll')
    a(f'buffer_load_dwordx4 {v(PQ,4)}, v12, {sWS}, {sT2} offen sc1')
    a(f'buffer_load_dwordx4 {v(PQ+4,4)}, v12, {sWS}, {sT3} offen sc1')
    a('s_waitcnt vmcnt(0)')
    for j in range(2):
        g0 = PQ + 4*j
        a(f'v_perm_b32 v{T+2*j}, v{g0+1}, v{g0}, {sT5}')
        a(f'v_perm_b32 v{T+2*j+1}, v{g0+3}, v{g0+2}, {sU0}')
        a(f'v_or_b32 v{T+2*j}, v{T+2*j}, v{T+2*j+1}')
    a(f'v_cmp_ne_u32 {sM0}, {sNONCE}, v{T}')
    a(f'v_cmp_ne_u32 {sM1}, {sNONCE}, v{T+2}')
    a(f's_or_b64 vcc, {sM0}, {sM1}')
    a('s_cbranch_scc0 L_pctxok')
    a(f's_add_u32 {sSPIN}, {sSPIN}, 1')
    a(f's_cmp_gt_u32 {sSPIN}, {spin_limit}')
    a('s_cbranch_scc1 L_pctxok')
    a(f's_cmp_lt_u32 {sSPIN}, {FASTTRY}')
    a('s_cbranch_scc1 L_pctxpoll')
    a(f's_cmp_lg_u32 {sSPIN}, {FASTTRY}')
    a('s_cbranch_scc1 L_pctxflip')
    nmask_on()
    a(f'buffer_store_dwordx4 {v(CP,4)}, v18, {sWS}, 0 offen sc1')
    exec_all()
    a.label('L_pctxflip')
    a(f's_xor_b32 {sT2}, {sT2}, {WS_PCTX ^ WS_PCTXF}')
    a(f's_xor_b32 {sT3}, {sT3}, {WS_PCTX ^ WS_PCTXF}')
    if slp: a(f's_sleep {slp}')
    a('s_branch L_pctxpoll')
    a.label('L_pctxok')
    stamp('pctxok')
    a(f's_cmp_ge_u32 {sSPIN}, {FASTTRY}')
    a('s_cbranch_scc1 L_pctxsdone')
    nmask_on()
    a(f'buffer_store_dwordx4 {v(CP,4)}, v18, {sWS}, 0 offen sc1')
    exec_all()
    a.label('L_pctxsdone')
    a(f's_mov_b32 {sT3}, 0xffffff00')
    for k in range(8): a(f'v_and_b32 v{PQ+k}, {sT3}, v{PQ+k}')
    for k in range(4): a(f'v_add_f32 v{PQ+k}, v{PQ+k}, v{PQ+4+k}')
    a(f'v_cvt_pk_bf16_f32 v{PQ}, v{PQ}, v{PQ+1}')
    a(f'v_cvt_pk_bf16_f32 v{PQ+1}, v{PQ+2}, v{PQ+3}')
    a(f'v_lshrrev_b32 v12, 7, v0')
    a(f'v_lshlrev_b32 v12, 10, v12')
    a(f'v_and_b32 v13, 3, v0')
    a(f'v_lshl_add_u32 v12, v13, 8, v12')
    a(f'v_bfe_u32 v13, v0, 2, 5')
    a(f'v_lshl_add_u32 v12, v13, 3, v12')
    a(f'ds_write_b64 v12, {v(PQ,2)} offset:{SM_CTXP}')
    a(f'v_lshrrev_b32 v12, 2, {vI}')
    a(f'v_lshlrev_b32 v12, 10, v12')
    a(f'v_and_b32 v13, 3, {vI}')
    a(f'v_lshl_add_u32 v12, v13, 8, v12')
    a(f'v_lshl_add_u32 v12, {vG}, 4, v12')
    a(f'v_lshlrev_b32 v13, 7, v13')
    a(f'v_lshl_add_u32 v13, {vG}, 4, v13')
    a(f'v_add_u32 v13, {SM_ACT}, v13')
    a(f'v_lshlrev_b32 v15, 4, {vG}')
    a(f'v_add_u32 v15, {SM_ZERO}, v15')
    a(f'v_cmp_gt_u32 vcc, 4, {vI}')
    a(f'v_cndmask_b32 v13, v15, v13, vcc')
    barrier('B7')
    a(f's_cmp_ge_u32 {sW}, 4')
    a('s_cbranch_scc1 L_fin')
    CF = RE; AF = RB; ACC = RF
    for ks in range(4):
        a(f'ds_read_b128 {v(CF+4*ks,4)}, v12 offset:{SM_CTXP+64*ks}')
    for ks in range(2):
        a(f'ds_read_b128 {v(AF+4*ks,4)}, v13 offset:{64*ks}')
    for k in range(4):
        a(f's_mov_b32 s{76+k}, {0x07060500 | k:#x}')
    a(f'v_mov_b32 v{T+5}, {sNONCE}')
    for ks in range(4):
        a(f's_waitcnt lgkmcnt({5-ks})')
        c = '0' if ks == 0 else v(ACC,4)
        a(f'v_mfma_f32_16x16x32_bf16 {v(ACC,4)}, {v(WOF+4*ks,4)}, {v(CF+4*ks,4)}, {c}')
    for ks in range(2):
        a(f's_waitcnt lgkmcnt({1-ks})')
        a(f'v_mfma_f32_16x16x32_bf16 {v(ACC,4)}, {v(W2F+4*ks,4)}, {v(AF+4*ks,4)}, {v(ACC,4)}')
    for rot in (4, 8):
        for r in range(4):
            a(f'v_add_f32_dpp v{ACC+r}, v{ACC+r}, v{ACC+r} row_ror:{rot} row_mask:0xf bank_mask:0xf')
    for r in range(4): a(f'v_perm_b32 v{T+r}, v{ACC+r}, v{T+5}, s{76+r}')
    nmask_on()
    a(f'buffer_store_dwordx4 {v(T,4)}, v19, {sWS}, 0 offen sc1')
    exec_all()
    stamp('poutpub')
    if stop == 'T1':
        a('s_waitcnt vmcnt(0) lgkmcnt(0)')
        flush_stamps()
        a('s_branch L_fin')
    if diag:
        a('s_waitcnt lgkmcnt(0)'); flush_stamps()
    a('s_cmp_ge_u32 s2, 128')
    a('s_cbranch_scc1 L_fin')
    a(f's_cmp_lg_u32 {sW}, 0')
    a('s_cbranch_scc1 L_fin')
    a(f's_lshl_b32 {sT2}, s2, 11')
    a(f's_add_u32 {sT2}, {sT2}, {WS_POUT}')
    a(f's_mov_b32 {sT5}, 0x0c0c0400')
    a(f's_mov_b32 {sT4}, 0x04000c0c')
    a(f's_lshl_b32 {sT0}, s2, 2')
    a(f'v_and_b32 v13, 3, {vL}')
    a(f'v_lshlrev_b32 v13, 9, v13')
    a(f'v_add3_u32 v13, v13, {vG}, {sT0}')
    a(f'v_lshlrev_b32 v13, 1, v13')
    a(f's_mov_b32 {sSPIN}, 0')
    a('s_waitcnt vmcnt(0)')
    stamp('poutack')
    a.label('L_poutpoll')
    a(f'buffer_load_dwordx4 {v(PQ,4)}, {vL16}, {sWS}, {sT2} offen sc1')
    a(f'buffer_load_dwordx4 {v(PQ+4,4)}, {vL16}, {sWS}, {sT2} offen offset:1024 sc1')
    a('s_waitcnt vmcnt(0)')
    for j in range(2):
        g0 = PQ + 4*j
        a(f'v_perm_b32 v{T+2*j}, v{g0+1}, v{g0}, {sT5}')
        a(f'v_perm_b32 v{T+2*j+1}, v{g0+3}, v{g0+2}, {sT4}')
        a(f'v_or_b32 v{T+2*j}, v{T+2*j}, v{T+2*j+1}')
    a(f'v_cmp_ne_u32 {sM0}, {sNONCE}, v{T}')
    a(f'v_cmp_ne_u32 {sM1}, {sNONCE}, v{T+2}')
    a(f's_or_b64 vcc, {sM0}, {sM1}')
    a('s_cbranch_scc0 L_poutok')
    spin_tail('L_poutpoll', 'L_poutok')
    a.label('L_poutok')
    stamp('poutok')
    a(f's_mov_b32 {sT3}, 0xffffff00')
    for k in range(8): a(f'v_and_b32 v{PQ+k}, {sT3}, v{PQ+k}')
    for k in range(4): a(f'v_add_f32 v{PQ+k}, v{PQ+k}, v{PQ+4+k}')
    for k in range(2): a(f'v_permlane32_swap_b32 v{PQ+k}, v{PQ+k+2}')
    for k in range(2): a(f'v_add_f32 v{PQ+k}, v{PQ+k}, v{PQ+k+2}')
    a(f'v_permlane16_swap_b32 v{PQ}, v{PQ+1}')
    a(f'v_add_f32 v{PQ}, v{PQ}, v{PQ+1}')
    a(f'v_add_f32_dpp v{PQ}, v{PQ}, v{PQ} row_ror:8 row_mask:0xf bank_mask:0xf')
    a(f'v_add_f32_dpp v{PQ}, v{PQ}, v{PQ} row_ror:4 row_mask:0xf bank_mask:0xf')
    a(f'v_cvt_pk_bf16_f32 v{PQ}, v{PQ}, v{PQ}')
    a('s_mov_b32 exec_lo, 0x000f000f'); a('s_mov_b32 exec_hi, 0x000f000f')
    a(f'buffer_store_short v{PQ}, v13, {sOUT}, 0 offen')
    a('s_cmp_lg_u32 s2, 0')
    a('s_cbranch_scc1 L_fin')
    a(f'v_mov_b32 v14, {sNONCE}')
    a(f'v_mov_b32 v15, {WS_EPOCH}')
    a('s_mov_b64 exec, 1')
    a(f'buffer_store_dword v14, v15, {sWS}, 0 offen sc1')
    a.label('L_fin')
    if diag:
        a('s_mov_b64 exec, -1')
        stamp('end')
        a('s_waitcnt lgkmcnt(0)')
        flush_stamps()
        a(f's_lshl_b32 {sT2}, s2, 3')
        a(f's_add_u32 {sT2}, {sT2}, {sW}')
        a(f's_lshl_b32 {sT2}, {sT2}, 7')
        a(f's_add_u32 {sT2}, {sT2}, {WS_DIAG}')
        a(f'v_and_b32 v12, 63, v0')
        a(f'v_lshlrev_b32 v12, 2, v12')
        a('s_mov_b64 exec, 0xffffffff')
        a(f'buffer_store_dword v255, v12, {sWS}, {sT2} offen')
        if 'dbg' in opts:
            sel = ['start', 'wq', 'qpub', 'qok', 'qlpub', 'B3a', 'qlok', 'B3', 'B5', 'partpub', 'partok', 'B6', 'pctxok', 'poutpub', 'end', 'start']
            a('s_cmp_ge_u32 s2, 128')
            a('s_cbranch_scc1 L_end')
            a(f's_cmp_lg_u32 {sW}, 0')
            a('s_cbranch_scc1 L_end')
            a('s_load_dwordx2 s[72:73], s[0:1], 96')
            a('v_mov_b32 v253, 0')
            for j, n in enumerate(sel):
                a(f'v_readlane_b32 s74, v255, {stamp_names.index(n)}')
                if j == 0: a('s_not_b32 s74, s74')
                a('s_nop 3')
                a(f'v_writelane_b32 v253, s74, {j}')
            a('s_waitcnt lgkmcnt(0)')
            a('s_mov_b64 exec, 0xffff')
            a('global_atomic_umax v12, v253, s[72:73]')
    a.label('L_end')
    a('s_endpgm')
    body = a.text()
    hdr = open('gated_mix__compressed_kv_cla__dense_activation_mish__decode.s.ref').read().split('\n')
    head = [l for l in hdr if l.startswith(';') and '@launch' not in l and 'Override launch' not in l and 'grid=ceil' not in l]
    out = '\n'.join(head) + '\n'
    out += f'; @launch grid=(256,1,1) block=(512,1,1) lds={LDS_BYTES}\n'
    out += f'.amdgcn_target "amdgcn-amd-amdhsa--gfx950"\n.text\n.globl {KNAME}\n.p2align 8\n.type {KNAME},@function\n{KNAME}:\n'
    out += body
    out += f'''.section .rodata,"a"
.p2align 6
.amdhsa_kernel {KNAME}
  .amdhsa_next_free_vgpr 256
  .amdhsa_next_free_sgpr 102
  .amdhsa_accum_offset 256
  .amdhsa_group_segment_fixed_size 0
  .amdhsa_kernarg_size 112
  .amdhsa_user_sgpr_count 2
  .amdhsa_user_sgpr_kernarg_segment_ptr 1
  .amdhsa_system_sgpr_workgroup_id_x 1
.end_amdhsa_kernel
'''
    return out, stamp_names

if __name__ == '__main__':
    ap = argparse.ArgumentParser()
    ap.add_argument('-o', default='out.s')
    ap.add_argument('--diag', action='store_true')
    ap.add_argument('--stop', default=None)
    ap.add_argument('--opt', action='append', default=[])
    args = ap.parse_args()
    txt, names = build(diag=args.diag, stop=args.stop, opts=args.opt)
    open(args.o, 'w').write(txt)
    if args.diag: open(args.o + '.stamps', 'w').write('\n'.join(names))
    print('wrote', args.o, len(txt.split('\n')), 'lines')
```
